```python
import torch

def _softmax(x, axis=-1):
    return torch.softmax(x, dim=axis)
def _gelu(x):
    return torch.nn.functional.gelu(x, approximate="tanh")
def _silu(x):
    return torch.nn.functional.silu(x)
def _sigmoid(x):
    return torch.sigmoid(x)
def _layernorm(x, axis=-1, eps=1e-5):
    m = x.mean(dim=axis, keepdim=True)
    v = x.var(dim=axis, keepdim=True, unbiased=False)
    return (x - m) / torch.sqrt(v + eps)
def _scatter_add(tgt, idx, src, axis=0):
    return tgt.clone().index_add_(axis, idx, src)
def _segment_sum(src, seg, n):
    out = torch.zeros((n,) + src.shape[1:], dtype=src.dtype)
    return out.index_add_(0, seg, src)
def _pad(x, pw):
    flat = tuple(v for pair in reversed(pw) for v in pair)
    return torch.nn.functional.pad(x, flat)

kernel_name = 'parallel_sum__sliding_block__glu_gated_reglu__prompt'

def setup_inputs():

    _w = (lambda a: (lambda t: t.to(torch.bfloat16) if t.is_floating_point() else t)(torch.as_tensor(a)))
    def _A_setup():
        B, S, D = 1, 2048, 640
        return {
            "x": _w((lambda *s: torch.randn(*s, dtype=torch.bfloat16) * 0.05)(B, S, D)),
            "wqkv": _w((lambda *s: torch.randn(*s, dtype=torch.bfloat16) * 0.05)(D, 3 * D)),
            "wo": _w((lambda *s: torch.randn(*s, dtype=torch.bfloat16) * 0.05)(D, D)),
        }
    _A_in = _A_setup()

    def _B_setup():
        B, S, D, F = 1, 2048, 640, 1536
        return {
            "x": _w((lambda *s: torch.randn(*s, dtype=torch.bfloat16) * 0.05)(B, S, D)),
            "W_gate": _w((lambda *s: torch.randn(*s, dtype=torch.bfloat16) * 0.8)(D, F) * (2.0 / D) ** 0.5),
            "W_up": _w((lambda *s: torch.randn(*s, dtype=torch.bfloat16) * 0.8)(D, F) * (2.0 / D) ** 0.5),
            "W_down": _w((lambda *s: torch.randn(*s, dtype=torch.bfloat16) * 0.8)(F, D) * (1.0 / F) ** 0.5),
        }
    _B_in = _B_setup()

    return {
        "A_x": _A_in["x"],
        "A_wqkv": _A_in["wqkv"],
        "A_wo": _A_in["wo"],
        "B_x": _B_in["x"],
        "B_W_gate": _B_in["W_gate"],
        "B_W_up": _B_in["W_up"],
        "B_W_down": _B_in["W_down"],
    }

def reference(A_x, A_wqkv, A_wo, B_x, B_W_gate, B_W_up, B_W_down):
    def _A_ref(x, wqkv, wo):
        B, S, D = x.shape
        H = 32; Dh = D // H; W = 256
        qkv = (lambda x, *d: x.permute(*d))((x @ wqkv).reshape(B, S, 3, H, Dh), 2, 0, 3, 1, 4)
        q, k, v = qkv[0], qkv[1], qkv[2]
        scores = torch.einsum("bhqd,bhkd->bhqk", q, k) * (Dh ** -0.5)
        idx = torch.arange(S)
        mask = (idx[:, None] - idx[None, :] >= 0) & (idx[:, None] - idx[None, :] < W)
        scores = torch.where(mask[None, None], scores, -1e9)
        p = _softmax(scores, axis=-1)
        o = torch.einsum("bhqk,bhkd->bhqd", p, v)
        return (lambda x, *d: x.permute(*d))(o, 0, 2, 1, 3).reshape(B, S, D) @ wo

    def _B_ref(x, W_gate, W_up, W_down):
        gate = torch.einsum("bsd,df->bsf", x, W_gate)
        up = torch.einsum("bsd,df->bsf", x, W_up)
        gate = gate * (lambda x, dt: x.to(dt))(gate > 0, gate.dtype)
        h = gate * up
        return torch.einsum("bsf,fd->bsd", h, W_down)

    x = A_x
    xn = _layernorm(x, axis=-1)
    return x + _A_ref(xn, A_wqkv, A_wo) + _B_ref(xn, B_W_gate, B_W_up, B_W_down)
```

```python
import re

_reg_re = re.compile(r'^(-|abs\()?([vs])(\d+)\)?$')
_rng_re = re.compile(r'^(-)?([vs])\[(\d+):(\d+)\]$')


def parse_op(tok):
    tok = tok.strip()
    m = _reg_re.match(tok)
    if m:
        return [(m.group(2), int(m.group(3)))]
    m = _rng_re.match(tok)
    if m:
        return [(m.group(2), i) for i in range(int(m.group(3)), int(m.group(4)) + 1)]
    if tok in ('vcc', 'vcc_lo', 'vcc_hi'):
        return [('vcc', 0)]
    if tok in ('exec', 'exec_lo', 'exec_hi'):
        return [('exec', 0)]
    if tok == 'm0':
        return [('m0', 0)]
    return []


TRANS = ('v_exp_', 'v_log_', 'v_rcp_', 'v_rsq_', 'v_sqrt_', 'v_sin_', 'v_cos_')


class Ins:
    __slots__ = ('text', 'mn', 'kind', 'defs', 'uses', 'srcc', 'srcab', 'passes', 'region', 'states', 'data', 'dpp')

    def __init__(self, text):
        self.text = text
        t = text.split(';')[0].strip()
        parts = t.split(None, 1)
        mn = parts[0]
        self.mn = mn
        rest = parts[1] if len(parts) > 1 else ''
        toks = [x.strip() for x in rest.split(',')] if rest else []
        mods = []
        if toks:
            lp = toks[-1].split()
            toks[-1] = lp[0] if lp else ''
            mods = lp[1:]
        ops = [parse_op(x) for x in toks]
        self.defs, self.uses, self.srcc, self.srcab, self.data = [], [], [], [], []
        self.passes = 0
        self.dpp = any(m.startswith(('row_', 'quad_perm', 'wave_')) for m in mods)
        self.states = 1
        flat = lambda l: [r for o in l for r in o]
        if mn.endswith(':'):
            self.kind = 'label'; self.states = 0
        elif mn.startswith('v_mfma'):
            self.kind = 'mfma'
            self.passes = 8 if '32x32' in mn else 4
            self.defs = ops[0]; self.srcab = ops[1] + ops[2]; self.srcc = ops[3]
            self.uses = self.srcab + self.srcc
        elif mn.startswith('v_permlane'):
            self.kind = 'permlane'; self.defs = flat(ops); self.uses = flat(ops)
        elif mn.startswith('v_readfirstlane') or mn.startswith('v_readlane'):
            self.kind = 'readlane'; self.defs = ops[0]; self.uses = flat(ops[1:])
        elif mn.startswith('v_dot2'):
            self.kind = 'dot'; self.defs = ops[0]; self.uses = flat(ops[1:]) + (ops[0] if 'dot2c' in mn else [])
            self.srcab = flat(ops[1:3])
        elif mn.startswith('v_'):
            self.kind = 'trans' if mn.startswith(TRANS) else 'valu'
            self.defs = ops[0]; self.uses = flat(ops[1:])
            if mn.startswith('v_fmac') or mn.startswith('v_writelane'):
                self.uses = self.uses + ops[0]
            if '_co_' in mn:
                self.defs = ops[0] + ops[1]; self.uses = flat(ops[2:])
        elif mn.startswith('ds_read') or mn.startswith('ds_bpermute') or mn.startswith('ds_swizzle'):
            self.kind = 'dsr'; self.defs = ops[0]; self.uses = flat(ops[1:])
        elif mn.startswith('ds_'):
            self.kind = 'dsw'; self.uses = flat(ops) + ([('m0', 0)] if 'addtid' in mn else [])
        elif mn.startswith('buffer_load') or mn.startswith('global_load'):
            if 'lds' in mods:
                self.kind = 'dma'; self.uses = flat(ops) + [('m0', 0)]
            else:
                self.kind = 'vload'; self.defs = ops[0]; self.uses = flat(ops[1:])
        elif mn.startswith('buffer_store') or mn.startswith('buffer_atomic'):
            self.kind = 'vstore'; self.uses = flat(ops); self.data = ops[0]
        elif mn.startswith('global_store'):
            self.kind = 'vstore'; self.uses = flat(ops); self.data = ops[1]
        elif mn.startswith('s_load') or mn.startswith('s_memtime') or mn.startswith('s_memrealtime'):
            self.kind = 'smem'; self.defs = ops[0]; self.uses = flat(ops[1:])
        elif mn == 's_nop':
            self.kind = 'nop'; self.states = int(toks[0], 0) + 1
        elif mn in ('s_waitcnt', 's_barrier', 's_setprio', 's_sleep', 's_endpgm'):
            self.kind = 'misc'
        elif mn.startswith('s_cbranch') or mn == 's_branch':
            self.kind = 'branch'
        elif mn.startswith('s_cmp') or mn.startswith('s_bitcmp'):
            self.kind = 'salu'; self.uses = flat(ops)
        elif mn.startswith('s_'):
            self.kind = 'salu'; self.defs = ops[0]; self.uses = flat(ops[1:])
            if 'saveexec' in mn:
                self.defs = self.defs + [('exec', 0)]
        else:
            raise ValueError('unknown instr ' + text)
        self.defs = set(self.defs); self.uses = set(self.uses)
        self.srcc = set(self.srcc); self.srcab = set(self.srcab); self.data = set(self.data)


VALUK = ('valu', 'trans', 'permlane', 'readlane', 'dot')
VMEMK = ('vload', 'vstore', 'dma')


def need_states(p, c):
    n = 0
    pv = {r for r in p.defs if r[0] == 'v'}
    ps = {r for r in p.defs if r[0] in ('s', 'vcc')}
    if p.kind in VALUK:
        if c.kind == 'mfma' and pv & c.uses:
            n = max(n, 3 if p.kind == 'dot' else 2)
        if c.dpp and pv & c.uses:
            n = max(n, 2)
        if c.kind == 'permlane' and pv & c.uses:
            n = max(n, 2)
        if c.kind == 'readlane' and pv & c.uses:
            n = max(n, 1)
        if p.kind == 'trans' and c.kind in VALUK + ('mfma',) and c.kind != 'trans' and pv & c.uses:
            n = max(n, 1)
        if p.kind == 'trans' and c.kind in VMEMK + ('dsw', 'dsr') and pv & c.uses:
            n = max(n, 1)
        if ps & c.uses:
            if c.kind in VMEMK:
                n = max(n, 5)
            elif c.kind == 'readlane':
                n = max(n, 4)
            elif c.kind in VALUK or c.kind == 'mfma':
                n = max(n, 2)
        if p.kind == 'dot' and pv & (c.uses | c.defs):
            if c.kind == 'dot' and c.mn == p.mn and not (pv & c.srcab):
                pass
            else:
                n = max(n, 3)
    if p.kind == 'mfma':
        big = 12 if p.passes == 8 else 8
        if c.kind == 'mfma':
            if pv & c.srcab:
                n = max(n, big)
            if pv & c.srcc:
                if not (c.srcc == pv and c.passes == p.passes):
                    n = max(n, 10 if p.passes == 8 else 6)
            if pv & c.defs and not (c.srcc == pv and c.passes == p.passes):
                n = max(n, 10 if p.passes == 8 else 6)
        else:
            if pv & (c.uses | c.defs):
                n = max(n, big)
            if c.kind in VALUK + ('vload', 'dsr') and p.srcc & c.defs:
                n = max(n, 7 if p.passes == 8 else 3)
    if p.kind == 'vstore' and len(p.data) >= 3 and p.data & c.defs:
        n = max(n, 2)
    if p.kind == 'salu' and ('m0', 0) in p.defs and ('m0', 0) in c.uses and c.kind in ('dma', 'dsw'):
        n = max(n, 1)
    return n


class Q:
    def __init__(self):
        self.e = []

    def copy(self):
        q = Q(); q.e = [list(x) for x in self.e]; return q


class Asm:
    def __init__(self):
        self.ins = []
        self.vm = Q(); self.lg = Q()
        self.nid = 0
        self.region = 0
        self.nregion = 0
        self.stack = []
        self.nlabel = 0
        self.smem_pending = set()

    def _emit(self, ins):
        ins.region = self.region
        need = 0
        dist = 0
        cur_r = None
        dist_r = 0
        for p in reversed(self.ins):
            if dist >= 20:
                break
            other = not (p.region == 0 or p.region == ins.region)
            if other:
                if p.region != cur_r:
                    cur_r = p.region; dist_r = 0
                d = dist + dist_r
            else:
                d = dist
            if d < 20 and p.kind != 'label':
                n = need_states(p, ins)
                if n > d:
                    need = max(need, n - d)
            if other:
                dist_r += p.states
            else:
                dist += p.states
        while need > 0:
            k = min(need, 16)
            nop = Ins('s_nop %d' % (k - 1)); nop.region = self.region
            self.ins.append(nop)
            need -= k
        self.ins.append(ins)

    def _wait_for(self, q, idx):
        n = sum(1 for x in q.e[idx + 1:] if x[2])
        return n

    def _autowait(self, ins):
        touched = ins.uses | ins.defs
        nv = nl = None
        for q, name in ((self.vm, 'v'), (self.lg, 'l')):
            last = -1
            for i, x in enumerate(q.e):
                if x[1] & touched:
                    last = i
            if last >= 0:
                n = self._wait_for(q, last)
                if name == 'v':
                    nv = n
                else:
                    nl = n
        if self.smem_pending & touched:
            nl = 0
        if nl is not None and self.smem_pending:
            nl = 0
        self.wait(nv, nl)

    def wait(self, nv=None, nl=None):
        parts = []
        if nv is not None:
            nv = min(nv, 63)
            parts.append('vmcnt(%d)' % nv)
            self._pop(self.vm, nv)
        if nl is not None:
            nl = min(nl, 15)
            parts.append('lgkmcnt(%d)' % nl)
            self._pop(self.lg, nl)
            if nl == 0:
                self.smem_pending = set()
        if parts:
            self._emit(Ins('s_waitcnt ' + ' '.join(parts)))

    def _pop(self, q, n):
        keep = []
        cnt = 0
        for x in reversed(q.e):
            if cnt >= n:
                break
            keep.append(x)
            if x[2]:
                cnt += 1
        q.e = list(reversed(keep))

    def i(self, text):
        ins = Ins(text)
        self._autowait(ins)
        self._emit(ins)
        h = None
        if ins.kind in VMEMK:
            self.nid += 1; h = self.nid
            self.vm.e.append([h, set(ins.defs), True])
        elif ins.kind in ('dsr', 'dsw'):
            self.nid += 1; h = self.nid
            self.lg.e.append([h, set(ins.defs), True])
        elif ins.kind == 'smem':
            self.smem_pending |= ins.defs
        return h

    def many(self, text):
        for l in text.strip().split('\n'):
            l = l.strip()
            if l and not l.startswith(';'):
                self.i(l)

    def wait_vm(self, h):
        for i, x in enumerate(self.vm.e):
            if x[0] == h:
                self.wait(nv=self._wait_for(self.vm, i))
                return

    def wait_vm_lg0(self, h):
        nv = None
        for i, x in enumerate(self.vm.e):
            if x[0] == h:
                nv = self._wait_for(self.vm, i)
        nl = 0 if (self.lg.e or self.smem_pending) else None
        self.wait(nv, nl)

    def label(self, name):
        l = Ins(name + ':'); l.region = self.region
        self.ins.append(l)

    def newlabel(self, base='L'):
        self.nlabel += 1
        return '%s_%d' % (base, self.nlabel)

    def begin_cond(self):
        assert self.region == 0
        self.nregion += 1
        self.region = self.nregion
        self.stack.append((self.vm.copy(), self.lg.copy(), self.nid))

    def end_cond(self):
        vm0, lg0, nid0 = self.stack.pop()
        for q0, q in ((vm0, self.vm), (lg0, self.lg)):
            new = [[x[0], x[1], False] for x in q.e if x[0] > nid0]
            q.e = q0.e + new
        self.region = 0

    def comment(self, t):
        l = Ins('x:'); l.text = '; ' + t; l.region = self.region
        self.ins.append(l)

    def text(self):
        out = []
        for x in self.ins:
            if x.kind == 'label':
                out.append(x.text)
            else:
                out.append('    ' + x.text)
        return '\n'.join(out) + '\n'
```

```python
import sys, math
from collections import deque
from asmlib import Asm

NAME = "parallel_sum__sliding_block__glu_gated_reglu__prompt"
STAMPS = '--stamps' in sys.argv

SIDE_B = 76 * 1024 + 32
SLOT = lambda j: 0 if j == 4 else 12288 + 16384 * j
SCR = 155904
CS1_OFF, CS2_OFF = SCR, SCR + 2048
LDS_BYTES = 163840
Q_OFF = 0
K_OFF = 64 * 40960
V_OFF = 2 * 64 * 40960
HO_OFF = 3 * 64 * 40960
HO_RT = 272 * 512
FLAG_OFF = HO_OFF + 64 * HO_RT
STAMP_OFF = FLAG_OFF + 3 * 16 * 128
STAT_OFF = STAMP_OFF + 256 * 8 * 256
WS_BYTES = STAT_OFF + 2048 * 8
QSCALE = (20 ** -0.5) * math.log2(math.e)

sW = 3
SRD_X, SRD_Q, SRD_F, SRD_D, SRD_O, SRD_WS, SRD_OUT, SRD_DBG = 4, 8, 12, 16, 20, 24, 28, 32
sRU, sCH, sRB, sCG, sKCA, sKCF, sW1K, sWF, sWD, sONES, sTOK = 36, 37, 38, 39, 40, 41, 42, 43, 44, 45, 46
sT0, sT1, sT2, sT3, sT4, sT5 = 47, 48, 49, 50, 51, 52
sKK, sRG, sCG8 = 53, 54, 55
sMASK = 56
sE40, sEV = 88, 90
sP = 92
sKKA = 93
sROW = 95
SD = 88
sSTAMP = 94
srd = lambda b: "s[%d:%d]" % (b, b + 3)
vr = lambda b, n: "v[%d:%d]" % (b, b + n - 1)
sr = lambda b, n: "s[%d:%d]" % (b, b + n - 1)

vXA = 1
vWA = 5
vDX, vDQ, vDF, vDFIN, vT = 9, 10, 11, 14, 15
WB = 16
ACC = 48
XF = 96

A = Asm()
fill = deque()
live = {}


def alloc(name, ranges):
    for (a0, a1) in ranges:
        assert a1 <= LDS_BYTES
        for n, rs in live.items():
            for (b0, b1) in rs:
                assert a1 <= b0 or b1 <= a0, "LDS overlap %s vs %s" % (name, n)
    live[name] = ranges


def release(name):
    del live[name]


def pump(n=1):
    for _ in range(n):
        if fill:
            fill.popleft()()


def drain():
    while fill:
        fill.popleft()()


nstamp = [0]
vSTAMP = None


def stamp(name="", clk=False):
    if not STAMPS:
        return
    k = nstamp[0]
    nstamp[0] += 1
    stamp_names.append(name)
    A.i("s_memtime s[100:101]" if clk else "s_memrealtime s[100:101]")
    A.wait(nl=0)
    A.i("v_mov_b32 v%d, s100" % vT)
    A.i("buffer_store_dword v%d, off, %s, s%d offset:%d" % (vT, srd(SRD_WS), sSTAMP, 4 * k))


stamp_names = []
early = []
ESR = [80, 81, 82, 83, 84, 85, 86, 87, 96, 97, 98, 99]
EARLY = '--early' in sys.argv


def estamp(name):
    if not (STAMPS and EARLY):
        return
    A.i("s_memrealtime s[100:101]")
    A.wait(nl=0)
    A.i("s_mov_b32 s%d, s100" % ESR[len(early)])
    early.append(name)


def eflush():
    if STAMPS:
        A.i("v_mov_b32 v%d, s%d" % (vT, sTOK))
        A.i("buffer_store_dword v%d, off, %s, s%d" % (vT, srd(SRD_WS), sSTAMP))
        nstamp[0] = 1; stamp_names.append("start")
        stamp("clk0", clk=True)
        stamp("clk0r")
    for i, name in enumerate(early):
        k = nstamp[0]
        nstamp[0] += 1
        stamp_names.append(name)
        A.i("v_mov_b32 v%d, s%d" % (vT, ESR[i]))
        A.i("buffer_store_dword v%d, off, %s, s%d offset:%d" % (vT, srd(SRD_WS), sSTAMP, 4 * k))


NODMA = '--nodma' in sys.argv
FINE = '--fine' in sys.argv
DMAEARLY = '--dmaearly' in sys.argv
NOMFMA = '--nomfma' in sys.argv
NODOT = '--nodot' in sys.argv
NOLDS = '--nolds' in sys.argv
_Ai = A.i
_phase = [0]


def _i(text):
    if _phase[0] == 1:
        if NOMFMA and text.startswith("v_mfma"):
            return None
        if NODOT and text.startswith("v_dot2"):
            return None
        if NOLDS and text.startswith("ds_read"):
            return None
    return _Ai(text)


A.i = _i


def dma(vaddr, sd, soff, sbase, ldsoff):
    if NODMA and sd in (SRD_X, SRD_Q, SRD_F):
        return None
    A.i("s_add_u32 m0, s%d, %d" % (sbase, ldsoff))
    return A.i("buffer_load_dwordx4 v%d, %s, s%d offen lds" % (vaddr, srd(sd), soff))


handles = {}


def adv_kc(s):
    A.i("s_add_u32 s%d, s%d, 1" % (s, s))
    A.i("s_cmp_eq_u32 s%d, 10" % s)
    A.i("s_cselect_b32 s%d, 0, s%d" % (s, s))


def issue_p1(j):
    sl = SLOT(j % 4)
    alloc("P%d" % j, [(sl, sl + 16384), (SIDE_B + sl, SIDE_B + sl + 16384)])

    def f0():
        A.i("s_lshl_b32 s%d, s%d, 7" % (sT0, sKCA))
        dma(vDX, SRD_X, sT0, sW1K, sl)

    def f1():
        A.i("s_mul_i32 s%d, s%d, 245760" % (sT1, sKCA))
        dma(vDQ, SRD_Q, sT1, sW1K, SIDE_B + sl)

    def f2():
        A.i("s_add_u32 s%d, s%d, 81920" % (sT0, sT0))
        dma(vDX, SRD_X, sT0, sW1K, sl + 8192)

    def f3():
        A.i("s_add_u32 s%d, s%d, 122880" % (sT1, sT1))
        handles["P%d" % j] = dma(vDQ, SRD_Q, sT1, sW1K, SIDE_B + sl + 8192)
        adv_kc(sKCA)
    return [f0, f1, f2, f3]


FSLOT = [4, 2, 3, 0, 1, 4, 2, 3, 0, 1]


def issue_f(j):
    sl = SLOT(FSLOT[j])
    alloc("F%d" % j, [(sl, sl + 12288), (SIDE_B + sl, SIDE_B + sl + 12288)])

    def mk(t):
        def f():
            if t == 0:
                A.i("s_mul_i32 s%d, s%d, 196608" % (sT2, sKCF))
            h = dma(vDF + t, SRD_F, sT2, sWF, sl + 1024 * t)
            if t == 2:
                handles["F%d" % j] = h
                adv_kc(sKCF)
        return f
    return [mk(0), mk(1), mk(2)]


UPOS = [0, 1, 8, 9, 10, 11, 12, 13, 14, 2, 3, 4, 5, 6, 7] + [0, 1, 8, 9, 10, 11, 12, 13, 14] + [2, 3, 4, 5, 6] + [7, 8, 9, 10, 11]


def issue_u(t):
    pos = UPOS[t] * 5120
    alloc("U%d" % t, [(pos, pos + 5120), (SIDE_B + pos, SIDE_B + pos + 5120)])

    def f():
        if t < 24:
            A.i("s_mul_i32 s%d, s%d, 40960" % (sT3, sKK))
            sd = SRD_D
        else:
            p, u = divmod(t - 24, 5)
            A.i("s_mul_i32 s%d, s%d, %d" % (sT3, sCH, 160 * 1280))
            A.i("s_add_u32 s%d, s%d, %d" % (sT3, sT3, (320 * p + 32 * u) * 1280))
            sd = SRD_O
        A.i("s_mov_b64 exec, %s" % sr(sE40, 2))
        dma(vDFIN, sd, sT3, sWD, pos)
        A.i("s_add_u32 s%d, s%d, 5120" % (sT3, sT3))
        handles["U%d" % t] = dma(vDFIN, sd, sT3, sWD, pos + 640)
        A.i("s_mov_b64 exec, -1")
        if t < 24:
            adv_kk(sKK)
    return [f]


def adv_kk(s):
    A.i("s_add_u32 s%d, s%d, 1" % (s, s))
    A.i("s_mul_i32 s%d, s%d, 24" % (sT4, sCH))
    A.i("s_add_u32 s%d, s%d, 24" % (sT5, sT4))
    A.i("s_cmp_eq_u32 s%d, s%d" % (s, sT5))
    A.i("s_cselect_b32 s%d, s%d, s%d" % (s, sT4, s))


def mk_srd(b, ptr, nbytes):
    A.i("s_mov_b32 s%d, s%d" % (b, ptr))
    A.i("s_mov_b32 s%d, s%d" % (b + 1, ptr + 1))
    A.i("s_mov_b32 s%d, %d" % (b + 2, nbytes))
    A.i("s_mov_b32 s%d, 0x00020000" % (b + 3))


def publish(phase):
    L = A.newlabel("Lpub")
    A.i("s_cmp_lg_u32 s%d, 0" % sW)
    A.i("s_cbranch_scc1 %s" % L)
    A.begin_cond()
    A.i("s_lshl_b32 s%d, s%d, 7" % (sT4, sRB))
    A.i("s_lshl_b32 s%d, s%d, 2" % (sT5, sCG))
    A.i("s_add_u32 s%d, s%d, s%d" % (sT4, sT4, sT5))
    A.i("s_add_u32 s%d, s%d, %d" % (sT4, sT4, FLAG_OFF + phase * 2048))
    A.i("s_mov_b64 exec, 1")
    A.i("v_mov_b32 v%d, s%d" % (vT, sTOK))
    A.i("buffer_store_dword v%d, off, %s, s%d sc1" % (vT, srd(SRD_WS), sT4))
    A.i("s_mov_b64 exec, -1")
    A.end_cond()
    A.label(L)


def poll_issue(vaddr, vdst):
    return A.i("buffer_load_dword v%d, v%d, %s, 0 offen sc1" % (vdst, vaddr, srd(SRD_WS)))


def poll_check(vaddr, vdst):
    Ld, Ll = A.newlabel("Lpd"), A.newlabel("Lpl")
    A.i("v_cmp_ne_u32 vcc, s%d, v%d" % (sTOK, vdst))
    A.i("s_cbranch_vccz %s" % Ld)
    A.begin_cond()
    A.i("s_mov_b32 s%d, 0" % sT5)
    A.label(Ll)
    A.i("s_sleep 1")
    A.i("buffer_load_dword v%d, v%d, %s, 0 offen sc1" % (vdst, vaddr, srd(SRD_WS)))
    A.i("s_add_u32 s%d, s%d, 1" % (sT5, sT5))
    A.wait(nv=0)
    A.i("v_cmp_ne_u32 vcc, s%d, v%d" % (sTOK, vdst))
    A.i("s_cmp_gt_u32 s%d, 200000" % sT5)
    A.i("s_cbranch_scc1 %s" % Ld)
    A.i("s_cbranch_vccnz %s" % Ll)
    A.end_cond()
    A.label(Ld)


def rnd_bf16(v):
    A.i("v_cvt_pk_bf16_f32 v%d, v%d, v%d" % (v, v, v))
    A.i("v_and_b32 v%d, 0xffff0000, v%d" % (v, v))


def split_cs(vcs, vdst):
    A.i("v_cvt_pk_bf16_f32 v%d, v%d, v%d" % (vdst, vcs, vcs))
    A.i("v_and_b32 v%d, 0xffff0000, v%d" % (vdst, vdst))
    A.i("v_sub_f32 v%d, v%d, v%d" % (vcs, vcs, vdst))
    A.i("v_cvt_pk_bf16_f32 v%d, v%d, v%d" % (vdst, vdst, vcs))
    A.i("v_mov_b32 v%d, 0" % (vdst + 1))


ROT = 'wg'
CSV = ''
for a in sys.argv:
    if a.startswith('--rot='):
        ROT = a[6:]
    if a.startswith('--cs='):
        CSV = a[5:]


def mod10(s_, tmp):
    A.i("s_mul_i32 s%d, s%d, 205" % (tmp, s_))
    A.i("s_lshr_b32 s%d, s%d, 11" % (tmp, tmp))
    A.i("s_mul_i32 s%d, s%d, 10" % (tmp, tmp))
    A.i("s_sub_u32 s%d, s%d, s%d" % (s_, s_, tmp))


def prologue():
    A.i("s_cmp_ge_u32 s2, 256")
    A.i("s_cbranch_scc1 L_end")
    A.i("s_load_dwordx16 s[56:71], s[0:1], 0")
    A.i("s_load_dwordx4 s[72:75], s[0:1], 64")
    A.i("s_memrealtime s[76:77]")
    A.i("s_getpc_b64 s[78:79]")
    A.i("v_lshrrev_b32 v1, 6, v0")
    A.i("s_lshr_b32 s%d, s2, 3" % sT1)
    A.i("s_lshl_b32 s%d, s%d, 11" % (sT2, sT1))
    A.i("v_lshrrev_b32 v2, 5, v0")
    A.i("v_lshl_add_u32 v2, v2, 7, s%d" % sT2)
    A.i("v_min_u32 v2, CODE_SPAN, v2")
    A.i("v_and_b32 v0, 63, v0")
    A.i("v_readfirstlane_b32 s%d, v1" % sW)
    A.i("global_load_dword v255, v2, s[78:79]")
    A.many(f"""
    s_and_b32 s{sT0}, s2, 7
    s_and_b32 s{sT2}, s{sT1}, 7
    s_lshr_b32 s{sT3}, s{sT1}, 3
    s_and_b32 s{sRB}, s{sT0}, 1
    s_lshl_b32 s{sRB}, s{sRB}, 3
    s_add_u32 s{sRB}, s{sRB}, s{sT2}
    s_lshr_b32 s{sCG}, s{sT0}, 1
    s_lshl_b32 s{sCG}, s{sCG}, 2
    s_add_u32 s{sCG}, s{sCG}, s{sT3}
    s_and_b32 s{sRG}, s{sT0}, 3
    s_lshl_b32 s{sRG}, s{sRG}, 3
    s_add_u32 s{sRG}, s{sRG}, s{sT2}
    s_lshr_b32 s{sCG8}, s{sT0}, 2
    s_lshl_b32 s{sCG8}, s{sCG8}, 2
    s_add_u32 s{sCG8}, s{sCG8}, s{sT3}
    s_and_b32 s{sRU}, s{sW}, 3
    s_lshr_b32 s{sCH}, s{sW}, 2
    s_lshl_b32 s{sW1K}, s{sW}, 10
    """)
    if ROT == 'wg':
        A.i("s_mul_i32 s%d, s%d, 3" % (sKCA, sCG))
        A.i("s_add_u32 s%d, s%d, s%d" % (sKCA, sKCA, sRB))
        mod10(sKCA, sT4)
        A.many(f"""
        s_mul_i32 s{sKK}, s{sRG}, 3
        s_mul_i32 s{sT4}, s{sKK}, 171
        s_lshr_b32 s{sT4}, s{sT4}, 12
        s_mul_i32 s{sT4}, s{sT4}, 24
        s_sub_u32 s{sKK}, s{sKK}, s{sT4}
        """)
    else:
        A.i("s_mul_i32 s%d, s%d, 5" % (sKCA, sT0))
        A.i("s_lshr_b32 s%d, s%d, 2" % (sKCA, sKCA))
        A.i("s_mul_i32 s%d, s%d, 3" % (sKK, sT0))
        if ROT == 'half':
            A.i("s_xor_b32 s%d, s%d, s%d" % (sT4, sRB, sCG))
            A.i("s_and_b32 s%d, s%d, 1" % (sT4, sT4))
            A.i("s_mul_i32 s%d, s%d, 5" % (sT4, sT4))
            A.i("s_add_u32 s%d, s%d, s%d" % (sKCA, sKCA, sT4))
            mod10(sKCA, sT4)
    A.i("s_mov_b32 s%d, s%d" % (sKCF, sKCA))
    A.many(f"""
    v_lshrrev_b32 v2, 3, v0
    v_lshrrev_b32 v3, 4, v0
    s_lshl_b32 s{sT0}, s{sW}, 2
    v_add_u32 v3, s{sT0}, v3
    v_xor_b32 v3, v3, v0
    v_and_b32 v3, 7, v3
    v_lshlrev_b32 v3, 4, v3
    s_lshl_b32 s{sT0}, s{sRB}, 7
    s_lshl_b32 s{sT1}, s{sW}, 3
    s_add_u32 s{sT0}, s{sT0}, s{sT1}
    v_add_u32 v2, s{sT0}, v2
    v_mul_u32_u24 v2, 1280, v2
    v_add_u32 v{vDX}, v2, v3
    """)
    A.many(f"""
    v_bfe_u32 v2, v0, 3, 2
    s_lshl_b32 s{sT0}, s{sW}, 2
    v_add_u32 v3, s{sT0}, v2
    v_mul_u32_u24 v3, 3840, v3
    v_lshrrev_b32 v2, 2, v0
    v_and_b32 v2, 4, v2
    v_xor_b32 v2, v2, v0
    v_and_b32 v2, 7, v2
    v_lshlrev_b32 v2, 4, v2
    v_add_u32 v3, v3, v2
    v_lshrrev_b32 v2, 5, v0
    v_lshlrev_b32 v2, 7, v2
    v_add_u32 v3, v3, v2
    s_lshl_b32 s{sT0}, s{sCG}, 8
    v_add_u32 v{vDQ}, s{sT0}, v3
    s_lshl_b32 s{sT0}, s{sRB}, 4
    s_add_u32 s{sT0}, s{sT0}, s{sCG}
    s_lshl_b32 s{sT0}, s{sT0}, 3
    s_add_u32 s{sROW}, s{sT0}, s{sW}
    s_mul_i32 s{sT3}, s{sROW}, 1280
    v_lshlrev_b32 v{vT}, 4, v0
    v_mov_b32 v{SD+4}, 0
    v_mov_b32 v{SD+5}, 0
    v_mov_b32 v{SD+6}, 0
    v_mov_b32 v{SD+7}, 0
    s_mov_b32 s{SRD_X+2}, {2048*1280}
    s_mov_b32 s{SRD_X+3}, 0x00020000
    s_cmp_eq_u32 s{sCG}, 15
    s_cselect_b32 s{SRD_Q+2}, 0, {640*3840}
    s_mov_b32 s{SRD_Q+3}, 0x00020000
    s_mov_b64 {sr(SRD_X,2)}, s[56:57]
    s_mov_b64 {sr(SRD_Q,2)}, s[58:59]
    """)
    estamp("karg")
    for f in issue_p1(0):
        f()
    estamp("issP0")
    mk_srd(SRD_DBG, 72, 256)
    L = A.newlabel("Ltok")
    A.i("s_or_b32 s%d, s2, s%d" % (sT4, sW))
    A.i("s_cmp_lg_u32 s%d, 0" % sT4)
    A.i("s_cbranch_scc1 %s" % L)
    A.begin_cond()
    A.i("s_or_b32 s%d, s76, 1" % sT4)
    A.i("s_mov_b64 exec, 1")
    A.i("v_mov_b32 v2, s%d" % sT4)
    A.i("buffer_store_dword v2, off, %s, 0 sc1" % srd(SRD_DBG))
    A.i("s_mov_b64 exec, -1")
    A.end_cond()
    A.label(L)
    A.many(f"""
    buffer_load_dwordx4 {vr(SD,4)}, v{vT}, {srd(SRD_X)}, s{sT3} offen
    s_mov_b64 exec, 0xffff
    buffer_load_dwordx4 {vr(SD+4,4)}, v{vT}, {srd(SRD_X)}, s{sT3} offen offset:1024
    s_mov_b64 exec, -1
    """)
    A.many(f"""
    s_mul_i32 s{sT0}, s{sCH}, {SIDE_B}
    s_mul_i32 s{sT1}, s{sRU}, 3072
    s_add_u32 s{sWF}, s{sT0}, s{sT1}
    s_mul_i32 s{sT1}, s{sRU}, 1280
    s_add_u32 s{sWD}, s{sT0}, s{sT1}
    s_mov_b32 s{sONES}, 0x3f803f80
    s_lshl_b32 s{sP}, s{sCH}, 1
    s_xor_b32 s{sP}, s{sP}, s{sRU}
    """)
    A.many(f"""
    v_lshrrev_b32 v2, 5, v0
    v_lshlrev_b32 v2, 11, v2
    v_bfe_u32 v3, v0, 2, 2
    v_lshl_add_u32 v2, v3, 7, v2
    v_lshrrev_b32 v3, 1, v3
    v_xor_b32 v3, s{sCH}, v3
    v_lshl_add_u32 v2, v3, 6, v2
    v_bfe_u32 v3, v0, 4, 1
    v_lshl_add_u32 v2, v3, 5, v2
    v_and_b32 v3, 3, v0
    v_lshl_add_u32 v{vT}, v3, 3, v2
    """)
    for i in range(4):
        A.i("s_xor_b32 s%d, s%d, %d" % (sT0, sP, i))
        A.i("s_lshl_b32 s%d, s%d, 12" % (sT0, sT0))
        A.i("s_add_u32 s%d, s%d, %d" % (sT0, sT0, SIDE_B + 12288))
        A.i("v_add_u32 v%d, s%d, v%d" % (vWA + i, sT0, vT))
    A.many(f"""
    v_bfe_u32 v2, v0, 1, 3
    v_lshrrev_b32 v3, 5, v0
    v_xor_b32 v2, v2, v3
    s_lshl_b32 s{sT0}, s{sP}, 1
    v_xor_b32 v2, s{sT0}, v2
    v_lshlrev_b32 v2, 4, v2
    v_and_b32 v3, 31, v0
    v_lshl_add_u32 v2, v3, 7, v2
    s_lshl_b32 s{sT0}, s{sRU}, 12
    s_add_u32 s{sT0}, s{sT0}, 12288
    v_add_u32 v{vT}, s{sT0}, v2
    """)
    for i in range(4):
        A.i("v_xor_b32 v%d, %d, v%d" % (vXA + i, 32 * i, vT))
    for f in issue_p1(1):
        f()
    estamp("issP1")
    A.i("buffer_load_dword v%d, off, %s, 0 sc1" % (vTOKV, srd(SRD_DBG)))
    mk_srd(SRD_O, 60, 640 * 1280)
    mk_srd(SRD_F, 64, 640 * 3072)
    A.i("s_cmp_eq_u32 s%d, 1" % sCH)
    A.i("s_cselect_b32 s%d, s66, s64" % SRD_F)
    A.i("s_cselect_b32 s%d, s67, s65" % (SRD_F + 1))
    mk_srd(SRD_D, 68, 1536 * 1280)
    mk_srd(SRD_OUT, 70, 2048 * 1280)
    mk_srd(SRD_WS, 74, WS_BYTES)
    if STAMPS:
        A.i("s_lshl_b32 s%d, s2, 3" % sSTAMP)
        A.i("s_add_u32 s%d, s%d, s%d" % (sSTAMP, sSTAMP, sW))
        A.i("s_lshl_b32 s%d, s%d, 8" % (sSTAMP, sSTAMP))
        A.i("s_add_u32 s%d, s%d, %d" % (sSTAMP, sSTAMP, STAMP_OFF))
        A.i("s_mov_b32 s%d, s76" % sTOK)
    A.many(f"""
    s_mov_b32 s{sE40}, -1
    s_mov_b32 s{sE40+1}, 0xff
    s_mov_b32 s{sEV}, 0xfffff
    s_mov_b32 s{sEV+1}, 0xfffff
    s_mul_i32 s{sT0}, s{sCH}, 24
    s_add_u32 s{sKK}, s{sKK}, s{sT0}
    s_mov_b32 s{sKKA}, s{sKK}
    """)
    A.i("s_mul_i32 s%d, s%d, %d" % (sT0, sRU, 16 * 3072))
    A.i("s_mul_i32 s%d, s%d, 192" % (sT1, sCG))
    A.i("s_add_u32 s%d, s%d, s%d" % (sT0, sT0, sT1))
    for t in range(3):
        A.many(f"""
        v_add_u32 v80, {64*t}, v0
        v_mul_u32_u24 v81, 171, v80
        v_lshrrev_b32 v81, 11, v81
        v_mul_u32_u24 v82, 12, v81
        v_sub_u32 v80, v80, v82
        v_lshlrev_b32 v80, 4, v80
        v_mul_u32_u24 v81, 3072, v81
        v_add3_u32 v{vDF+t}, v80, v81, s{sT0}
        """)
    A.many(f"""
    v_mul_u32_u24 v81, 205, v0
    v_lshrrev_b32 v81, 11, v81
    v_mul_u32_u24 v82, 10, v81
    v_sub_u32 v80, v0, v82
    v_lshlrev_b32 v80, 4, v80
    v_mul_u32_u24 v81, 1280, v81
    s_mul_i32 s{sT0}, s{sRU}, {8*1280}
    s_mul_i32 s{sT1}, s{sCG8}, 160
    s_add_u32 s{sT0}, s{sT0}, s{sT1}
    v_add3_u32 v{vDFIN}, v80, v81, s{sT0}
    """)
    for r in range(80, 84):
        A.i("v_mov_b32 v%d, 0" % r)


def row_stats():
    for r in range(8):
        A.i("v_dot2c_f32_bf16 v%d, s%d, v%d" % (vSUM, sONES, SD + r))
        A.i("v_dot2c_f32_bf16 v%d, v%d, v%d" % (vSQ, SD + r, SD + r))
    A.i("v_permlane32_swap_b32 v%d, v%d" % (vSUM, vSQ))
    A.i("v_add_f32 v%d, v%d, v%d" % (vSUM, vSUM, vSQ))
    for k in (1, 2, 4, 8):
        A.i("v_add_f32_dpp v%d, v%d, v%d row_ror:%d row_mask:0xf bank_mask:0xf" % (vSUM, vSUM, vSUM, k))
    for k in range(4):
        A.i("v_readlane_b32 s%d, v%d, %d" % (sT2 + k, vSUM, 16 * k))
    A.many(f"""
    v_mov_b32 v80, s{sT2}
    v_mov_b32 v81, s{sT4}
    v_add_f32 v80, s{sT3}, v80
    v_add_f32 v81, s{sT5}, v81
    v_mul_f32 v80, {1.0/640!r}, v80
    v_mul_f32 v81, {1.0/640!r}, v81
    v_fma_f32 v81, -v80, v80, v81
    v_max_f32 v81, 0, v81
    """)
    rnd_bf16(81)
    A.i("v_add_f32 v81, 0x3727c5ac, v81")
    rnd_bf16(81)
    A.i("v_sqrt_f32 v81, v81")
    A.i("v_sub_f32 v80, 0, v80")
    A.i("v_cvt_pk_bf16_f32 v%d, v80, v81" % vGR)


vSUM, vSQ, vCS = 80, 81, 82
vTOKV = 85
vGR = 86


def xf(j, i):
    return XF + 16 * j + 4 * i


def p1_wread(j, i):
    for b2 in range(2):
        for half in range(2):
            A.i("ds_read_b64_tr_b16 %s, v%d offset:%d" % (vr(WB + 8 * i + 4 * b2 + 2 * half, 2), vWA + i,
                                                         16384 * (j % 4) + half * 1024 + b2 * 512))


def p1_m(j, i, b2):
    c = "0" if (j == 0 and i == 0) else vr(ACC + 16 * b2, 16)
    A.i("v_mfma_f32_32x32x16_bf16 %s, %s, %s, %s" % (vr(ACC + 16 * b2, 16), vr(WB + 8 * i + 4 * b2, 4), vr(xf(j, i), 4), c))


def p1_read(j, i):
    A.i("ds_read_b128 %s, v%d offset:%d" % (vr(xf(j, i), 4), vXA + i, 16384 * (j % 4)))
    p1_wread(j, i)


def p1_cs(b2, rs):
    for r in rs:
        A.i("v_dot2c_f32_bf16 v%d, s%d, v%d" % (vCS + b2, sONES, WB + 4 * b2 + r))


def get_token():
    Ld, Ll = A.newlabel("Ltd"), A.newlabel("Ltl")
    A.i("v_readfirstlane_b32 s%d, v%d" % (sTOK, vTOKV))
    A.i("s_cmp_lg_u32 s%d, 0" % sTOK)
    A.i("s_cbranch_scc1 %s" % Ld)
    A.begin_cond()
    A.i("s_mov_b32 s%d, 0" % sT5)
    A.label(Ll)
    A.i("buffer_load_dword v%d, off, %s, 0 sc1" % (vTOKV, srd(SRD_DBG)))
    A.i("s_add_u32 s%d, s%d, 1" % (sT5, sT5))
    A.wait(nv=0)
    A.i("v_readfirstlane_b32 s%d, v%d" % (sTOK, vTOKV))
    A.i("s_cmp_gt_u32 s%d, 200000" % sT5)
    A.i("s_cbranch_scc1 %s" % Ld)
    A.i("s_cmp_eq_u32 s%d, 0" % sTOK)
    A.i("s_cbranch_scc1 %s" % Ll)
    A.end_cond()
    A.label(Ld)


vSTA = 84


def pass1():
    for j in range(10):
        A.comment("pass1 stage %d" % j)
        A.wait_vm_lg0(handles["P%d" % j])
        if j == 0:
            estamp("P0arr")
        A.i("s_barrier")
        if j == 0:
            eflush()
        if FINE or j == 0:
            stamp("p1b%d" % j)
        if j == 0:
            fill.extend(issue_p1(2) + issue_p1(3))
        if j >= 1:
            release("P%d" % (j - 1))
            if j + 3 < 10:
                fill.extend(issue_p1(j + 3))
            else:
                fill.extend(issue_f(j - 6))
        if j == 4:
            fill.extend(issue_f(0))
        for i in range(4):
            if j >= 1:
                p1_m(j - 1, 2 + i // 2, i % 2)
            p1_read(j, i)
            if DMAEARLY:
                pump()
        if j == 0:
            pump(4)
            row_stats()
        if j == 1:
            get_token()
            A.i("v_mov_b32 v%d, s%d" % (vGR + 1, sTOK))
            A.i("s_lshl_b32 s%d, s%d, 3" % (sT4, sROW))
            A.i("s_add_u32 s%d, s%d, %d" % (sT4, sT4, STAT_OFF))
            A.i("s_mov_b64 exec, 1")
            A.i("buffer_store_dwordx2 %s, off, %s, s%d sc1" % (vr(vGR, 2), srd(SRD_WS), sT4))
            A.i("s_mov_b64 exec, -1")
        if j == 7:
            A.many(f"""
            v_and_b32 v{vSTA}, 31, v0
            s_lshl_b32 s{sT4}, s{sRB}, 2
            s_add_u32 s{sT4}, s{sT4}, s{sRU}
            s_lshl_b32 s{sT4}, s{sT4}, 8
            s_add_u32 s{sT4}, s{sT4}, {STAT_OFF}
            v_lshl_add_u32 v{vSTA}, v{vSTA}, 3, s{sT4}
            buffer_load_dwordx2 {vr(vGR,2)}, v{vSTA}, {srd(SRD_WS)}, 0 offen sc1
            """)
        for k in range(4):
            p1_m(j, k // 2, k % 2)
            p1_cs(k // 2, (0, 1) if k % 2 == 0 else (2, 3))
            pump(2 if j == 4 else 1)
        drain()
    A.many(f"""
    v_permlane32_swap_b32 v{vCS}, v{vCS+1}
    s_lshl_b32 s{sT0}, s{sCH}, 10
    s_add_u32 s{sT0}, s{sT0}, {CS1_OFF}
    v_and_b32 v{vXA}, 31, v0
    v_lshl_add_u32 v{vXA+2}, v{vXA}, 4, s{sT0}
    s_lshl_b32 s{sT1}, s{sRU}, 2
    s_add_u32 s{sT0}, s{sT0}, s{sT1}
    v_lshl_add_u32 v{vXA+1}, v0, 4, s{sT0}
    v_add_f32 v{vCS}, v{vCS}, v{vCS+1}
    ds_write_b32 v{vXA+1}, v{vCS}
    """)


vNM, vRS = 9, 10


def f_addr():
    A.many(f"""
    v_lshrrev_b32 v{vT}, 5, v0
    v_lshlrev_b32 v{vT}, 3, v{vT}
    v_bfe_u32 v88, v0, 2, 2
    v_add_u32 v{vT}, v{vT}, v88
    v_mul_u32_u24 v{vT}, 192, v{vT}
    v_bfe_u32 v88, v0, 4, 1
    v_mul_u32_u24 v88, {SIDE_B}, v88
    v_add_u32 v{vT}, v{vT}, v88
    v_and_b32 v88, 3, v0
    v_lshl_add_u32 v{vT}, v88, 3, v{vT}
    s_mul_i32 s{sT1}, s{sCH}, 96
    """)
    for i in range(4):
        A.i("s_xor_b32 s%d, s%d, %d" % (sT0, sP, i))
        A.i("s_mul_i32 s%d, s%d, 3072" % (sT0, sT0))
        A.i("s_add_u32 s%d, s%d, s%d" % (sT0, sT0, sT1))
        A.i("v_add_u32 v%d, s%d, v%d" % (vWA + i, sT0, vT))


def p2_read(n):
    j, rem = divmod(n, 12)
    i, f = divmod(rem, 3)
    for half in range(2):
        A.i("ds_read_b64_tr_b16 %s, v%d offset:%d" % (vr(WB + 4 * (n % 8) + 2 * half, 2), vWA + i,
                                                     SLOT(FSLOT[j]) + half * 768 + 32 * f))


def epilogue1():
    A.comment("epilogue 1")
    f_addr()
    A.wait_vm_lg0(handles["F0"])
    A.i("s_barrier")
    release("P9")
    stamp("e1b")
    fill.extend(issue_f(4))
    p1_m(9, 2, 0)
    A.i("ds_read_b128 v[88:91], v%d" % (vXA + 2))
    A.i("ds_read_b128 v[92:95], v%d offset:512" % (vXA + 2))
    p1_m(9, 2, 1)
    for n in range(4):
        p2_read(n)
    p1_m(9, 3, 0)
    pump()
    Ld, Ll = A.newlabel("Lsd"), A.newlabel("Lsl")
    A.i("v_cmp_ne_u32 vcc, s%d, v%d" % (sTOK, vGR + 1))
    A.i("s_cbranch_vccz %s" % Ld)
    A.begin_cond()
    A.i("s_mov_b32 s%d, 0" % sT5)
    A.label(Ll)
    A.i("s_sleep 1")
    A.i("buffer_load_dwordx2 %s, v%d, %s, 0 offen sc1" % (vr(vGR, 2), vSTA, srd(SRD_WS)))
    A.i("s_add_u32 s%d, s%d, 1" % (sT5, sT5))
    A.wait(nv=0)
    A.i("v_cmp_ne_u32 vcc, s%d, v%d" % (sTOK, vGR + 1))
    A.i("s_cmp_gt_u32 s%d, 200000" % sT5)
    A.i("s_cbranch_scc1 %s" % Ld)
    A.i("s_cbranch_vccnz %s" % Ll)
    A.end_cond()
    A.label(Ld)
    p1_m(9, 3, 1)
    drain()
    A.many(f"""
    v_and_b32 v81, 0xffff0000, v{vGR}
    v_and_b32 v80, 0xffff, v{vGR}
    v_rcp_f32 v{vRS}, v81
    v_cmp_gt_u32 vcc, 32, v0
    v_lshl_or_b32 v86, v80, 16, v80
    v_add_f32 v88, v88, v89
    v_add_f32 v90, v90, v91
    v_mov_b32 v87, 0
    v_cndmask_b32 v86, 0, v86, vcc
    v_add_f32 v92, v92, v93
    v_add_f32 v94, v94, v95
    v_add_f32 v82, v88, v90
    v_add_f32 v83, v92, v94
    v_mov_b32 v{vNM}, v86
    """)
    split_cs(82, 88)
    split_cs(83, 90)
    for b2 in range(2):
        A.i("v_mfma_f32_32x32x8_bf16 %s, %s, v[86:87], %s" % (vr(ACC + 16 * b2, 16), vr(88 + 2 * b2, 2), vr(ACC + 16 * b2, 16)))
    A.i("s_cmp_lt_u32 s%d, 5" % sCG)
    A.i("s_cselect_b32 s%d, 0x%08x, 1.0" % (sT0, f2u(QSCALE)))
    A.i("v_mul_f32 v84, s%d, v%d" % (sT0, vRS))
    A.many(f"""
    s_mul_i32 s{sT0}, s{sCG}, 205
    s_lshr_b32 s{sT0}, s{sT0}, 10
    s_mul_i32 s{sT1}, s{sT0}, 5
    s_sub_u32 s{sT1}, s{sCG}, s{sT1}
    s_mul_i32 s{sT0}, s{sT0}, {K_OFF}
    s_lshl_b32 s{sT3}, s{sRB}, 2
    s_add_u32 s{sT3}, s{sT3}, s{sRU}
    s_mul_i32 s{sT3}, s{sT3}, 40960
    s_add_u32 s{sT0}, s{sT0}, s{sT3}
    """)
    for b2 in range(2):
        for r in range(16):
            A.i("v_mul_f32 v%d, v84, v%d" % (ACC + 16 * b2 + r, ACC + 16 * b2 + r))
        for r in range(8):
            A.i("v_cvt_pk_bf16_f32 v%d, v%d, v%d" % (ACC + 16 * b2 + r, ACC + 16 * b2 + 2 * r, ACC + 16 * b2 + 2 * r + 1))
    LV, LE = A.newlabel("Lv"), A.newlabel("Le")
    A.i("s_cmp_ge_u32 s%d, 10" % sCG)
    A.i("s_cbranch_scc1 %s" % LV)
    A.begin_cond()
    A.many(f"""
    s_lshl_b32 s{sT1}, s{sT1}, 13
    s_add_u32 s{sT0}, s{sT0}, s{sT1}
    s_lshl_b32 s{sT1}, s{sCH}, 11
    s_add_u32 s{sT0}, s{sT0}, s{sT1}
    s_add_u32 s{sT1}, s{sT0}, 4096
    v_lshlrev_b32 v{vT}, 4, v0
    """)
    for b2 in range(2):
        b = ACC + 16 * b2
        for t in range(2):
            A.i("v_permlane32_swap_b32 v%d, v%d" % (b + 4 * t, b + 4 * t + 2))
            A.i("v_permlane32_swap_b32 v%d, v%d" % (b + 4 * t + 1, b + 4 * t + 3))
            handles["st1a"] = A.i("buffer_store_dwordx4 %s, v%d, %s, s%d offen offset:%d sc1" % (vr(b + 4 * t, 4), vT, srd(SRD_WS), sT1 if b2 else sT0, 1024 * t))
    A.i("s_branch %s" % LE)
    A.end_cond()
    A.label(LV)
    A.i("s_cmp_eq_u32 s%d, 15" % sCG)
    A.i("s_cbranch_scc1 %s" % LE)
    A.begin_cond()
    A.many(f"""
    s_lshl_b32 s{sT1}, s{sT1}, 12
    s_add_u32 s{sT0}, s{sT0}, s{sT1}
    s_lshl_b32 s{sT1}, s{sCH}, 10
    s_add_u32 s{sT0}, s{sT0}, s{sT1}
    s_add_u32 s{sT1}, s{sT0}, 20480
    s_mul_i32 s{sT3}, s{sCH}, {SIDE_B}
    s_lshl_b32 s{sT4}, s{sRU}, 14
    s_add_u32 s{sT3}, s{sT3}, s{sT4}
    s_add_u32 s{sT3}, s{sT3}, 24576
    v_and_b32 v80, 31, v0
    v_mul_u32_u24 v81, 72, v80
    v_lshrrev_b32 v82, 5, v0
    v_lshl_add_u32 v81, v82, 3, v81
    v_add_u32 v81, s{sT3}, v81
    v_lshlrev_b32 v{vT}, 5, v80
    v_lshl_add_u32 v{vT}, v82, 4, v{vT}
    v_lshlrev_b32 v82, 2, v82
    v_bfe_u32 v83, v0, 2, 2
    v_add_u32 v82, v82, v83
    v_mul_u32_u24 v82, 72, v82
    v_bfe_u32 v83, v0, 4, 1
    v_lshl_add_u32 v82, v83, 5, v82
    v_and_b32 v83, 3, v0
    v_lshl_add_u32 v82, v83, 3, v82
    v_add_u32 v82, s{sT3}, v82
    """)
    for b2 in range(2):
        b = ACC + 16 * b2
        for j in range(4):
            A.i("ds_write_b64 v81, %s offset:%d" % (vr(b + 2 * j, 2), 16 * j))
        A.wait(nl=0)
        for s in range(2):
            for half in range(2):
                A.i("ds_read_b64_tr_b16 %s, v82 offset:%d" % (vr(b + 8 + 4 * s + 2 * half, 2), (16 * s + 8 * half) * 72))
        for s in range(2):
            handles["st1b"] = A.i("buffer_store_dwordx4 %s, v%d, %s, s%d offen offset:%d sc1" % (vr(b + 8 + 4 * s, 4), vT, srd(SRD_WS), sT1 if s else sT0, 2048 * b2))
    A.end_cond()
    A.label(LE)
    stamp("e1end")
    for r in range(1, 4):
        A.i("v_mov_b32 v%d, 0" % r)


import struct
f2u = lambda f: struct.unpack('<I', struct.pack('<f', f))[0]

KM, KT, QM, QT, VV = 96, 132, 150, 154, 156
PP, PM = 228, 244
vPOLL, vPOLLA = 252, 253
vAK, vAKT, vAV = 228, 229, 230


def att_prep_fillers():
    L = []

    def addr():
        A.many(f"""
        s_mul_i32 s{sT0}, s{sCG}, 2560
        s_mul_i32 s{sT1}, s{sCH}, 1536
        s_add_u32 s{sT1}, s{sT1}, s{sT0}
        v_lshlrev_b32 v{vAK}, 4, v0
        v_add_u32 v{vAK}, s{sT1}, v{vAK}
        s_lshl_b32 s{sT1}, s{sCH}, 3
        s_add_u32 s{sT1}, s{sT1}, s{sT0}
        s_add_u32 s{sT1}, s{sT1}, 1024
        v_and_b32 v{vAV}, 31, v0
        v_lshl_add_u32 v{vAKT}, v{vAV}, 4, s{sT1}
        s_lshl_b32 s{sT1}, s{sCG}, 1
        s_add_u32 s{sT1}, s{sT1}, s{sCH}
        s_mul_i32 s{sT1}, s{sT1}, 640
        v_lshl_add_u32 v{vAV}, v{vAV}, 5, s{sT1}
        v_lshrrev_b32 v{vT}, 5, v0
        v_lshl_add_u32 v{vAV}, v{vT}, 4, v{vAV}
        s_lshl_b32 s{sT2}, s{sRB}, 2
        s_add_u32 s{sT2}, s{sT2}, s{sRU}
        """)
        A.i("v_mov_b32 v%d, 0x3f80" % QT)
        A.i("v_mov_b32 v%d, 0" % (QT + 1))
        A.i("s_mul_i32 s%d, s%d, 40960" % (sT0, sT2))
        A.i("buffer_load_dwordx4 %s, v%d, %s, s%d offen sc1" % (vr(QM, 4), vAK, srd(SRD_WS), sT0))
        A.i("s_mov_b64 exec, 0xffffffff")
        A.i("buffer_load_dwordx2 %s, v%d, %s, s%d offen sc1" % (vr(QT, 2), vAKT, srd(SRD_WS), sT0))
        A.i("s_mov_b64 exec, -1")
    L.append(addr)

    def mkk(t):
        def f():
            A.i("s_sub_i32 s%d, s%d, %d" % (sT0, sT2, 8 - t))
            A.i("s_cmp_lt_i32 s%d, 0" % sT0)
            A.i("s_cselect_b32 s%d, 0xfe80, 0" % sT1)
            A.i("s_max_i32 s%d, s%d, 0" % (sT0, sT0))
            A.i("s_mul_i32 s%d, s%d, 40960" % (sT0, sT0))
            A.i("s_add_u32 s%d, s%d, %d" % (sT0, sT0, K_OFF))
            A.i("v_mov_b32 v%d, s%d" % (KT + 2 * t, sT1))
            A.i("v_mov_b32 v%d, 0" % (KT + 2 * t + 1))
            A.i("buffer_load_dwordx4 %s, v%d, %s, s%d offen sc1" % (vr(KM + 4 * t, 4), vAK, srd(SRD_WS), sT0))
            A.i("s_mov_b64 exec, 0xffffffff")
            A.i("buffer_load_dwordx2 %s, v%d, %s, s%d offen sc1" % (vr(KT + 2 * t, 2), vAKT, srd(SRD_WS), sT0))
            A.i("s_mov_b64 exec, -1")
        return f

    def mkv(t):
        def f():
            A.i("s_sub_i32 s%d, s%d, %d" % (sT0, sT2, 8 - t))
            A.i("s_max_i32 s%d, s%d, 0" % (sT0, sT0))
            A.i("s_mul_i32 s%d, s%d, 40960" % (sT0, sT0))
            A.i("s_add_u32 s%d, s%d, %d" % (sT0, sT0, V_OFF))
            A.i("s_add_u32 s%d, s%d, 20480" % (sT1, sT0))
            A.i("s_mov_b64 exec, %s" % sr(sEV, 2))
            A.i("buffer_load_dwordx4 %s, v%d, %s, s%d offen sc1" % (vr(VV + 8 * t, 4), vAV, srd(SRD_WS), sT0))
            A.i("buffer_load_dwordx4 %s, v%d, %s, s%d offen sc1" % (vr(VV + 8 * t + 4, 4), vAV, srd(SRD_WS), sT1))
            A.i("s_mov_b64 exec, -1")
        return f
    for t in TORDER:
        L.append(mkk(t))
    for t in TORDER:
        L.append(mkv(t))
    return L


TORDER = [0, 8, 1, 2, 3, 4, 5, 6, 7]


def ones_fillers(lo, hi):
    L = []
    for r0 in range(lo, hi, 6):
        def f(r0=r0):
            for r in range(r0, min(r0 + 6, hi)):
                A.i("v_mov_b32 v%d, s%d" % (r, sONES))
        L.append(f)
    return L


def mask_fillers():
    L = []

    def f0():
        A.i("v_and_b32 v4, 31, v0")
        A.i("v_lshrrev_b32 v%d, 5, v0" % vT)
        A.i("v_lshlrev_b32 v%d, 2, v%d" % (vT, vT))
        A.i("v_sub_u32 v4, v4, v%d" % vT)
    L.append(f0)
    for q in range(4):
        def f(q=q):
            for r in range(4 * q, 4 * q + 4):
                A.i("v_cmp_gt_i32 %s, %d, v4" % (sr(sMASK + 2 * r, 2), 8 * (r // 4) + r % 4))
        L.append(f)
    return L


def flag_addr(v, phase, srb, back):
    A.i("v_lshrrev_b32 v%d, 4, v0" % v)
    A.i("v_min_u32 v%d, %d, v%d" % (v, back, v))
    A.i("s_sub_i32 s%d, s%d, %d" % (sT4, srb, back))
    A.i("v_add_u32 v%d, s%d, v%d" % (v, sT4, v))
    A.i("v_max_i32 v%d, 0, v%d" % (v, v))
    A.i("v_lshlrev_b32 v%d, 7, v%d" % (v, v))
    A.i("v_and_b32 v%d, 15, v0" % vT)
    A.i("v_lshl_add_u32 v%d, v%d, 2, v%d" % (v, vT, v))
    A.i("v_add_u32 v%d, %d, v%d" % (v, FLAG_OFF + phase * 2048, v))


def pass2():
    N = 120
    nread = 4
    vCS2 = 1
    LA = 5
    for n in range(N):
        j, rem = divmod(n, 12)
        i, f = divmod(rem, 3)
        if rem == 12 - LA and j < 9:
            A.comment("pass2 barrier for stage %d" % (j + 1))
            assert nread == 12 * (j + 1)
            if j + 1 == 3:
                A.wait_vm(handles["st1b"])
            A.wait_vm(handles["F%d" % (j + 1)])
            A.i("s_barrier")
            if j >= 1:
                release("F%d" % (j - 1))
            if FINE:
                stamp("p2b%d" % (j + 1))
        if n == 60 and CSV:
            A.wait(nv=0)
            stamp("end")
            stamp("clk1", clk=True)
            A.i("s_endpgm")
            return
        if n == 108:
            drain()
            stamp("prepoll0")
            poll_check(XF, XF + 1)
            stamp("poll0")
            for r in range(224, 228):
                A.i("v_mov_b32 v%d, s%d" % (r, sONES))
            fill.extend(att_prep_fillers())
        c = "0" if n < 3 else vr(ACC + 16 * f, 16)
        A.i("v_mfma_f32_32x32x16_bf16 %s, %s, %s, %s" % (vr(ACC + 16 * f, 16), vr(WB + 4 * (n % 8), 4), vr(xf(j, i), 4), c))
        if CSV == 'clump4':
            if rem % 4 == 0:
                for r in range(4):
                    A.i("v_dot2c_f32_bf16 v%d, s%d, v%d" % (vCS2 + rem // 4, sONES, WB + 4 * (n % 8) + r))
        elif CSV == 'clump12':
            if rem == 2:
                for r in range(4):
                    for q in range(3):
                        A.i("v_dot2c_f32_bf16 v%d, s%d, v%d" % (vCS2 + q, sONES, WB + 4 * ((n - 2 + q) % 8) + r))
        elif CSV == 'valu':
            n0 = n - rem % 4
            rr = WB + 4 * (n0 % 8) + rem % 4
            A.i("v_and_b32 v4, 0xffff0000, v%d" % rr)
            A.i("v_lshlrev_b32 v%d, 16, v%d" % (vT, rr))
            A.i("v_add_f32 v%d, v%d, v4" % (vCS2 + rem // 4, vCS2 + rem // 4))
            A.i("v_add_f32 v%d, v%d, v%d" % (vCS2 + rem // 4, vCS2 + rem // 4, vT))
        elif CSV == 'mfma3':
            if rem % 4 == 0:
                A.i("v_mfma_f32_16x16x32_bf16 v[0:3], %s, v[12:15], v[0:3]" % vr(WB + 4 * (n % 8), 4))
        elif CSV == 'mfma4':
            if rem % 3 == 0:
                A.i("v_mfma_f32_16x16x32_bf16 v[0:3], %s, v[12:15], v[0:3]" % vr(WB + 4 * (n % 8), 4))
        elif CSV == 'none':
            pass
        elif j < 9:
            n0 = n - rem % 4
            A.i("v_dot2c_f32_bf16 v%d, s%d, v%d" % (vCS2 + rem // 4, sONES, WB + 4 * (n0 % 8) + rem % 4))
        elif rem < 6:
            for r in (0, 1):
                A.i("v_dot2c_f32_bf16 v%d, s%d, v%d" % (vCS2 + rem // 2, sONES, WB + 4 * ((108 + rem // 2) % 8) + 2 * (rem % 2) + r))
        while nread < min(n + LA + 1, N):
            p2_read(nread); nread += 1
        if n == 114:
            A.many(f"""
            v_mov_b32 v{vT}, v{vCS2+2}
            v_permlane32_swap_b32 v{vCS2}, v{vCS2+1}
            s_lshl_b32 s{sT4}, s{sCH}, 11
            s_add_u32 s{sT4}, s{sT4}, {CS2_OFF}
            v_permlane32_swap_b32 v{vCS2+2}, v{vT}
            s_lshl_b32 s{sT5}, s{sRU}, 2
            s_add_u32 s{sT5}, s{sT5}, s{sT4}
            v_lshl_add_u32 v4, v0, 4, s{sT5}
            v_add_f32 v{vCS2}, v{vCS2}, v{vCS2+1}
            v_add_f32 v{vCS2+2}, v{vCS2+2}, v{vT}
            ds_write_b32 v4, v{vCS2}
            ds_write_b32 v4, v{vCS2+2} offset:1024
            v_and_b32 v4, 31, v0
            v_lshl_add_u32 v4, v4, 4, s{sT4}
            """)
        if n == 116:
            A.wait(nl=0)
            A.i("s_barrier")
            release("F8")
            release("F9")
            for f2 in range(3):
                A.i("ds_read_b128 %s, v4 offset:%d" % (vr(WB + 4 * f2, 4), 512 * f2))
        if rem == 12 - LA and j < 9:
            if j + 1 == 3:
                publish(0)
            if 1 <= j and j + 4 < 10:
                fill.extend(issue_f(j + 4))
            if j == 5:
                fill.extend(mask_fillers())
            if j == 6:
                fill.extend(issue_u(0) + issue_u(1))
                fill.extend(ones_fillers(VV, 192))
            if j == 7:
                flag_addr(XF, 0, sRB, 2)
                poll_issue(XF, XF + 1)
                fill.extend(issue_u(2) + issue_u(3) + issue_u(4) + issue_u(5))
                fill.extend(ones_fillers(192, 208))
            if j == 8:
                fill.extend(issue_u(6) + issue_u(7) + issue_u(8))
                fill.extend(ones_fillers(208, 224))
        pump(2 if j == 9 else 1)
    drain()
    stamp("p2end")


def epilogue2():
    A.comment("epilogue 2")
    vCS2 = 1
    for f in range(3):
        A.i("v_add_f32 v%d, v%d, v%d" % (WB + 4 * f, WB + 4 * f, WB + 4 * f + 1))
        A.i("v_add_f32 v%d, v%d, v%d" % (WB + 4 * f + 2, WB + 4 * f + 2, WB + 4 * f + 3))
        A.i("v_add_f32 v%d, v%d, v%d" % (vCS2 + f, WB + 4 * f, WB + 4 * f + 2))
    A.i("v_mov_b32 v%d, v%d" % (WB + 6, vNM))
    A.i("v_mov_b32 v%d, 0" % (WB + 7))
    for f in range(3):
        split_cs(vCS2 + f, WB + 2 * f)
    for f in range(3):
        A.i("v_mfma_f32_32x32x8_bf16 %s, %s, %s, %s" % (vr(ACC + 16 * f, 16), vr(WB + 2 * f, 2), vr(WB + 6, 2), vr(ACC + 16 * f, 16)))
    for t in range(9, 15):
        fill.extend(issue_u(t))
    A.i("v_mul_f32 v%d, v%d, v%d" % (vRS, vRS, vRS))
    A.many(f"""
    s_mul_i32 s{sT0}, s{sT2}, {HO_RT}
    s_mul_i32 s{sT1}, s{sCG}, 6144
    s_add_u32 s{sT0}, s{sT0}, s{sT1}
    s_mul_i32 s{sT1}, s{sCH}, 3072
    s_add_u32 s{sT0}, s{sT0}, s{sT1}
    s_add_u32 s{sT0}, s{sT0}, {HO_OFF}
    v_lshlrev_b32 v{vT}, 4, v0
    """)
    for f in range(3):
        b = ACC + 16 * f
        for r in range(8):
            A.i("v_max_f32 v%d, 0, v%d" % (b + r, b + r))
            A.i("v_mul_f32 v%d, v%d, v%d" % (b + 8 + r, vRS, b + 8 + r))
        for r in range(8):
            A.i("v_mul_f32 v%d, v%d, v%d" % (b + r, b + r, b + 8 + r))
        for r in range(4):
            A.i("v_cvt_pk_bf16_f32 v%d, v%d, v%d" % (WB + 8 + 4 * f + r, b + 2 * r, b + 2 * r + 1))
        handles["st2"] = A.i("buffer_store_dwordx4 %s, v%d, %s, s%d offen offset:%d sc1" % (vr(WB + 8 + 4 * f, 4), vT, srd(SRD_WS), sT0, 1024 * f))


SB = [48, 64, 80]
CM, OO = 16, 32
vM = 1


def qk(t, dst, c):
    A.i("v_mfma_f32_32x32x16_bf16 %s, %s, %s, %s" % (vr(dst, 16), vr(KM + 4 * t, 4), vr(QM, 4), c))
    A.i("v_mfma_f32_32x32x8_bf16 %s, %s, %s, %s" % (vr(dst, 16), vr(KT + 2 * t, 2), vr(QT, 2), vr(dst, 16)))


def merge(a, b):
    for r in range(16):
        A.i("v_cndmask_b32 v%d, v%d, v%d, %s" % (b + r, b + r, a + r, sr(sMASK + 2 * r, 2)))


def attention():
    A.comment("attention pass A")
    stamp("e2end")
    A.i("v_mov_b32 v2, 0xffff0000")
    for j in range(8):
        A.i("v_cndmask_b32 v%d, 0, v2, %s" % (PM + j, sr(sMASK + 2 * (2 * j + 1), 2)))
        A.i("v_cndmask_b32 v%d, v%d, -1, %s" % (PM + j, PM + j, sr(sMASK + 2 * (2 * j), 2)))
    qk(0, SB[0], "0")
    qk(8, SB[1], "0")
    qk(1, SB[2], "0")
    pump()
    merge(SB[0], SB[1])
    qk(2, SB[0], "0")
    first = True
    seq = [(None, 1)] + [(t, (t + 1) % 3) for t in range(1, 8)]
    for idx, (t, bi) in enumerate(seq):
        b = SB[bi]
        for r in range(0, 16, 4):
            if first:
                A.i("v_max_f32 v%d, v%d, v%d" % (vM, b, b + 1))
                A.i("v_max_f32 v%d, v%d, v%d" % (vM + 1, b + 2, b + 3))
                first = False
            else:
                A.i("v_max3_f32 v%d, v%d, v%d, v%d" % (vM, b + r, b + r + 1, vM))
                A.i("v_max3_f32 v%d, v%d, v%d, v%d" % (vM + 1, b + r + 2, b + r + 3, vM + 1))
        nt = idx + 3
        if nt <= 7:
            qk(nt, b, "0")
            pump()
    A.i("v_max_f32 v%d, v%d, v%d" % (vM, vM, vM + 1))
    A.i("v_mov_b32 v%d, v%d" % (vM + 1, vM))
    A.i("v_permlane32_swap_b32 v%d, v%d" % (vM + 1, vM))
    A.i("v_max_f32 v%d, v%d, v%d" % (vM, vM, vM + 1))
    for r in range(16):
        A.i("v_sub_f32 v%d, 0, v%d" % (CM + r, vM))
    drain()
    stamp("attA")
    cm = vr(CM, 16)
    qk(0, SB[0], cm)
    qk(8, SB[1], cm)
    qk(1, SB[2], cm)
    A.wait_vm(handles["st2"])
    A.i("s_barrier")
    publish(1)
    merge(SB[0], SB[1])
    qk(2, SB[0], cm)
    firstpv = True
    for idx, (t, bi) in enumerate(seq):
        b = SB[bi]
        p = PP + 8 * (idx % 2)
        for r in range(16):
            A.i("v_exp_f32 v%d, v%d" % (b + r, b + r))
            if r % 2 == 1 and r >= 3:
                A.i("v_cvt_pk_bf16_f32 v%d, v%d, v%d" % (p + (r - 3) // 2, b + r - 3, b + r - 2))
        A.i("v_cvt_pk_bf16_f32 v%d, v%d, v%d" % (p + 7, b + 14, b + 15))
        nt = idx + 3
        if nt <= 7:
            qk(nt, b, cm)
        if t is None:
            p2 = PP + 8
            for j in range(8):
                A.i("v_bfi_b32 v%d, v%d, 0, v%d" % (p2 + j, PM + j, p + j))
                A.i("v_and_b32 v%d, v%d, v%d" % (p + j, PM + j, p + j))
            lst = [(0, p), (8, p2)]
        else:
            lst = [(t, p)]
        for (tv, pp) in lst:
            for s in range(2):
                A.i("v_mfma_f32_32x32x16_bf16 %s, %s, %s, %s" % (vr(OO, 16), vr(VV + 8 * tv + 4 * s, 4), vr(pp + 4 * s, 4), "0" if firstpv else vr(OO, 16)))
                firstpv = False
        if idx == 4:
            A.i("s_lshr_b32 s%d, s%d, 1" % (sT3, sRG))
            flag_addr(vPOLLA, 1, sT3, 0)
            poll_issue(vPOLLA, vPOLL)
    stamp("attB")


HA = 96
OA = 192
vAH, vAH2, vAM, vAT, vAA = 1, 2, 3, 4, 5
FW = 48
FACC = 232
XR = 88


def final():
    A.comment("final: h loads")
    poll_check(vPOLLA, vPOLL)
    stamp("poll1")
    A.many(f"""
    s_lshl_b32 s{sT0}, s{sRG}, 1
    s_lshr_b32 s{sT1}, s{sRU}, 1
    s_add_u32 s{sT0}, s{sT0}, s{sT1}
    s_mul_i32 s{sT0}, s{sT0}, {HO_RT}
    s_and_b32 s{sT1}, s{sRU}, 1
    s_lshl_b32 s{sT1}, s{sT1}, 8
    s_add_u32 s{sT0}, s{sT0}, s{sT1}
    s_add_u32 s{sT0}, s{sT0}, {HO_OFF}
    v_lshrrev_b32 v6, 4, v0
    v_and_b32 v7, 15, v0
    v_lshlrev_b32 v{vAA}, 9, v6
    v_lshl_add_u32 v{vAA}, v7, 4, v{vAA}
    v_add_u32 v{vAA}, s{sT0}, v{vAA}
    """)
    for t in range(24):
        A.i("s_lshl_b32 s%d, s%d, 11" % (sT0, sKKA))
        A.i("buffer_load_dwordx4 %s, v%d, %s, s%d offen sc1" % (vr(HA + 4 * t, 4), vAA, srd(SRD_WS), sT0))
        adv_kk(sKKA)
    A.i("v_rcp_f32 v8, v%d" % (OO + 12))
    A.many(f"""
    s_mul_i32 s{sT0}, s{sT2}, {HO_RT}
    s_add_u32 s{sT0}, s{sT0}, {HO_OFF + 192 * 512}
    s_lshl_b32 s{sT1}, s{sCG}, 9
    s_add_u32 s{sT3}, s{sT0}, s{sT1}
    s_lshl_b32 s{sT1}, s{sCH}, 3
    s_add_u32 s{sT3}, s{sT3}, s{sT1}
    s_add_u32 s{sT3}, s{sT3}, {64 * 512}
    s_lshl_b32 s{sT1}, s{sCG}, 11
    s_add_u32 s{sT0}, s{sT0}, s{sT1}
    s_lshl_b32 s{sT1}, s{sCH}, 10
    s_add_u32 s{sT0}, s{sT0}, s{sT1}
    v_lshlrev_b32 v{vT}, 4, v0
    """)
    for r in range(12):
        A.i("v_mul_f32 v%d, v8, v%d" % (OO + r, OO + r))
    for r in range(6):
        A.i("v_cvt_pk_bf16_f32 v%d, v%d, v%d" % (CM + r, OO + 2 * r, OO + 2 * r + 1))
    A.i("buffer_store_dwordx4 %s, v%d, %s, s%d offen sc1" % (vr(CM, 4), vT, srd(SRD_WS), sT0))
    A.i("s_mov_b64 exec, 0xffffffff")
    handles["st3"] = A.i("buffer_store_dwordx2 %s, v%d, %s, s%d offen sc1" % (vr(CM + 4, 2), vT, srd(SRD_WS), sT3))
    A.i("s_mov_b64 exec, -1")
    A.many(f"""
    v_bfe_u32 v7, v0, 2, 2
    v_mul_u32_u24 v7, 160, v7
    v_and_b32 v8, 3, v0
    v_lshl_add_u32 v7, v8, 3, v7
    s_mul_i32 s{sT0}, s{sCH}, {SIDE_B}
    v_add_u32 v7, s{sT0}, v7
    v_mul_u32_u24 v8, {40*160}, v6
    v_add_u32 v{vAT}, v7, v8
    v_add_u32 v{vAT}, {16*160}, v{vAT}
    v_and_b32 v8, 1, v6
    v_mul_u32_u24 v8, {4*160}, v8
    v_add_u32 v7, v7, v8
    v_lshrrev_b32 v8, 1, v6
    v_mul_u32_u24 v9, {16*160}, v8
    v_add_u32 v{vAH}, v7, v9
    v_add_u32 v{vAH2}, 32768, v{vAH}
    v_mul_u32_u24 v9, {20*160}, v8
    v_add_u32 v{vAM}, v7, v9
    """)
    A.many(f"""
    s_lshl_b32 s{sT0}, s{sRG}, 1
    s_add_u32 s{sT0}, s{sT0}, s{sCH}
    s_mul_i32 s{sP}, s{sT0}, {32*1280}
    s_add_u32 s{sKKA}, s{sP}, 5120
    s_mov_b64 exec, {sr(sE40,2)}
    buffer_load_dwordx4 {vr(XR,4)}, v{vDFIN}, {srd(SRD_X)}, s{sP} offen
    buffer_load_dwordx4 {vr(XR+4,4)}, v{vDFIN}, {srd(SRD_X)}, s{sKKA} offen
    s_mov_b64 exec, -1
    """)

    def wread(n):
        t, tile = divmod(n, 5)
        for half in range(2):
            if t < 24:
                pos = UPOS[t] * 5120
                a = vAH
                if UPOS[t] >= 13:
                    a = vAH2; pos -= 32768
                off = pos + half * 8 * 160 + 32 * tile
            else:
                p, u = divmod(t - 24, 5)
                pos = UPOS[24 + 5 * p] * 5120
                if u < 4:
                    a = vAM; off = pos + u * 40 * 160 + half * 8 * 160 + 32 * tile
                else:
                    a = vAT; off = pos + half * 20 * 160 + 32 * tile
            A.i("ds_read_b64_tr_b16 %s, v%d offset:%d" % (vr(FW + 4 * (n % 10) + 2 * half, 2), a, off))

    BAR = [0, 3, 6, 9, 12, 15, 18, 21, 24, 29, 32]
    N = 34 * 5
    nread = 0
    issued = 15
    released = 0

    def need_units(t):
        return t if t < 24 else (28 if t < 29 else 33)

    def do_barrier(t0):
        nonlocal issued, released
        nxt = [b for b in BAR if b > t0]
        tend = (nxt[0] if nxt else 34) - 1
        u = need_units(tend)
        drain()
        assert u < issued, (t0, u, issued)
        if t0 == 6:
            A.wait_vm(handles["st3"])
        A.wait_vm_lg0(handles["U%d" % u])
        A.i("s_barrier")
        if FINE or t0 in (0, 24):
            stamp("fb%d" % t0)
        if t0 == 6:
            publish(2)
        rel = t0 if t0 <= 24 else (29 if t0 >= 29 else 24)
        while released < rel:
            release("U%d" % released); released += 1
        while issued < 34:
            pos = UPOS[issued]
            busy = any(("U%d" % k) in live and UPOS[k] == pos for k in range(34))
            if busy:
                break
            fill.extend(issue_u(issued)); issued += 1

    do_barrier(0)
    for n in range(N):
        t, tile = divmod(n, 5)
        while nread < min(n + 9, N):
            tr = nread // 5
            if nread % 5 == 0 and tr in BAR and tr != 0 and ("B%d" % tr) not in handles:
                if n < nread - 5:
                    break
                do_barrier(tr)
                handles["B%d" % tr] = 1
            wread(nread); nread += 1
        if t == 14 and tile == 0:
            A.i("v_add_u32 v%d, 2048, v%d" % (vPOLLA, vPOLLA))
            poll_issue(vPOLLA, vPOLL)
        if t == 17 and tile == 0:
            stamp("prepoll2")
            poll_check(vPOLLA, vPOLL)
            stamp("poll2")
            A.i("s_lshl_b32 s%d, s%d, 13" % (sT0, sCH))
            A.i("s_add_u32 s%d, s%d, %d" % (sT0, sT0, 192 * 512))
            A.i("s_lshl_b32 s%d, s%d, 11" % (sT1, sCH))
            A.i("s_add_u32 s%d, s%d, %d" % (sT1, sT1, 256 * 512))
            for p in range(2):
                for u in range(4):
                    A.i("buffer_load_dwordx4 %s, v%d, %s, s%d offen offset:%d sc1" % (vr(OA + 20 * p + 4 * u, 4), vAA, srd(SRD_WS), sT0, 2048 * (u % 2)))
                    if u % 2 == 1:
                        A.i("s_add_u32 s%d, s%d, %d" % (sT0, sT0, 4096 if u == 1 else 16384 - 4096))
                A.i("buffer_load_dwordx4 %s, v%d, %s, s%d offen sc1" % (vr(OA + 20 * p + 16, 4), vAA, srd(SRD_WS), sT1))
                A.i("s_add_u32 s%d, s%d, 4096" % (sT1, sT1))
        c = "0" if t == 0 else vr(FACC + 4 * tile, 4)
        A.i("v_mfma_f32_16x16x32_bf16 %s, %s, %s, %s" % (vr(FACC + 4 * tile, 4), vr(FW + 4 * (n % 10), 4), vr(HA + 4 * t, 4), c))
        if tile in (1, 3):
            pump()
    drain()
    stamp("fend")
    alloc("RED", [(0, 64 * 336), (SIDE_B, SIDE_B + 64 * 336)])
    A.many(f"""
    v_and_b32 v7, 15, v0
    v_mul_u32_u24 v7, 336, v7
    v_lshl_add_u32 v7, v6, 4, v7
    s_mul_i32 s{sT0}, s{sCH}, {SIDE_B}
    s_mul_i32 s{sT1}, s{sRU}, {16*336}
    s_add_u32 s{sT0}, s{sT0}, s{sT1}
    v_add_u32 v7, s{sT0}, v7
    v_mul_u32_u24 v8, 205, v0
    v_lshrrev_b32 v8, 11, v8
    v_mul_u32_u24 v9, 10, v8
    v_sub_u32 v9, v0, v9
    v_mul_u32_u24 v8, 336, v8
    v_lshl_add_u32 v8, v9, 5, v8
    s_mul_i32 s{sT0}, s{sW}, {8*336}
    v_add_u32 v8, s{sT0}, v8
    v_add_u32 v9, {SIDE_B}, v8
    """)
    for tile in range(5):
        A.i("ds_write_b128 v7, %s offset:%d" % (vr(FACC + 4 * tile, 4), 64 * tile))
    A.wait(nl=0)
    A.i("s_barrier")
    A.i("s_mov_b64 exec, %s" % sr(sE40, 2))
    for t in range(2):
        for k, a in enumerate((8, 9)):
            for q in range(2):
                A.i("ds_read_b128 %s, v%d offset:%d" % (vr(96 + 16 * t + 8 * k + 4 * q, 4), a, t * 4 * 336 + 16 * q))
    for t in range(2):
        b = 96 + 16 * t
        for r in range(4):
            A.i("v_lshlrev_b32 v10, 16, v%d" % (XR + 4 * t + r))
            A.i("v_and_b32 v11, 0xffff0000, v%d" % (XR + 4 * t + r))
            A.i("v_add_f32 v%d, v%d, v%d" % (b + 2 * r, b + 2 * r, b + 8 + 2 * r))
            A.i("v_add_f32 v%d, v%d, v%d" % (b + 2 * r + 1, b + 2 * r + 1, b + 8 + 2 * r + 1))
            A.i("v_add_f32 v%d, v%d, v10" % (b + 2 * r, b + 2 * r))
            A.i("v_add_f32 v%d, v%d, v11" % (b + 2 * r + 1, b + 2 * r + 1))
            A.i("v_cvt_pk_bf16_f32 v%d, v%d, v%d" % (128 + 4 * t + r, b + 2 * r, b + 2 * r + 1))
        A.i("buffer_store_dwordx4 %s, v%d, %s, s%d offen" % (vr(128 + 4 * t, 4), vDFIN, srd(SRD_OUT), sKKA if t else sP))
    if STAMPS:
        A.i("s_mov_b64 exec, -1")
        A.wait(nv=0)
        stamp("end")
        stamp("clk1", clk=True)


prologue()
_phase[0] = 1
pass1()
epilogue1()
pass2()
_phase[0] = 0
if not CSV:
    epilogue2()
    attention()
    final()
body = A.text()

hdr = open('cdna_kernels/%s.s.ref' % NAME).read().split('; Override launch')[0]
out = hdr + f"""; @launch grid=(256,1,1) block=(512,1,1) lds={LDS_BYTES}
.amdgcn_target "amdgcn-amd-amdhsa--gfx950"
.text
.globl {NAME}_kernel
.p2align 8
.type {NAME}_kernel,@function
.set CODE_SPAN, L_end - {NAME}_kernel - 1024
{NAME}_kernel:
{body}L_end:
    s_endpgm
.section .rodata,"a"
.p2align 6
.amdhsa_kernel {NAME}_kernel
  .amdhsa_next_free_vgpr 256
  .amdhsa_next_free_sgpr 102
  .amdhsa_accum_offset 256
  .amdhsa_group_segment_fixed_size 0
  .amdhsa_kernarg_size 80
  .amdhsa_user_sgpr_count 2
  .amdhsa_user_sgpr_kernarg_segment_ptr 1
  .amdhsa_system_sgpr_workgroup_id_x 1
.end_amdhsa_kernel
"""
open(sys.argv[1], 'w').write(out)
print("instructions:", sum(1 for x in A.ins if x.kind != 'label'))

if STAMPS:
    open(sys.argv[1] + '.stamps', 'w').write(' '.join(stamp_names))
```

```python
import sys, math, struct
from collections import deque
from asmlib import Asm

NAME = "parallel_sum__sliding_block__glu_gated_reglu__prompt"
ARG = sys.argv[2:]
STAMPS = '--stamps' in ARG
FINE = '--fine' in ARG
EARLY = '--early' in ARG
FORCESLOW = '--slow' in ARG


def opt(name, dflt):
    for a in ARG:
        if a.startswith('--%s=' % name):
            return int(a.split('=')[1])
    return dflt


f2u = lambda f: struct.unpack('<I', struct.pack('<f', f))[0]

MOFF = 40992
XB = 82048
KVS = 5152
SCR = 147584
LDS_BYTES = 163840
CELLS = [8192 * c for c in range(5)] + [MOFF + 8192 * c for c in range(5)] + [XB + 8192 * c for c in range(8)]
RBS = 2064
RB0 = 40960
HPS = 64 * 7680 + 128
HO_OFF = 16 * HPS
HO_RT = 272 * 512 + 128
WP_OFF = HO_OFF + 64 * HO_RT
WPS = 340 * 1024 + 128
GB_OFF = WP_OFF + 8 * WPS + 8192
GBS = 40 * 2048 + 128
FLP_OFF = GB_OFF + 16 * GBS
FLQ_OFF = FLP_OFF + 1024
FLH_OFF = FLQ_OFF + 1024
STAT_OFF = FLH_OFF + 3 * 8192
STAMP_OFF = STAT_OFF + 2048 * 8
WS_BYTES = STAMP_OFF + 2048 * 256
QSCALE = (20 ** -0.5) * math.log2(math.e)

sW = 3
SRD_X, SRD_Q, SRD_G, SRD_U, SRD_WS, SRD_OUT, SRD_PK, SRD_DBG = 4, 8, 12, 16, 20, 24, 28, 32
sRU, sCH, sRB, sCG, sKX, sKQ, sKG, sKB, sW1K, sTOK, sRT = range(36, 47)
sT0, sT1, sT2, sT3, sT4, sT5 = range(47, 53)
sRG, sCG8, sWPO = 53, 54, 55
sMASK = 56
sPD0, sPD1 = 88, 89
sHI, sE40 = 90, 92
sSTAMP, sROW = 94, 95
sD0, sD1, sD2, sD3 = 96, 97, 98, 99
srd = lambda b: "s[%d:%d]" % (b, b + 3)
vr = lambda b, n: "v[%d:%d]" % (b, b + n - 1)
sr = lambda b, n: "s[%d:%d]" % (b, b + n - 1)

vL = 0
vWA = 1
vDG = 5
vNM = 6
SEL, CS0, CS1, RING = 8, 12, 16, 20
vRS = 40
TMP = 41
vT = 47
A0, A1, A2 = 48, 64, 80
XF = 96
vXA, vDX, vDX2, vDQ, vTOKV = 80, 84, 85, 86, 87
vGR = 88
vSTA = 90
vPKR, vPKS = 92, 94
E = 224
QM, QT, vM, PM = 96, 100, 102, 104
vKA, vKT, vVA, vHA, vPA, vPD = 112, 113, 114, 118, 119, 120
KMR, KTR, VVR = 124, 136, 144
HAR, HBR = 160, 224
OO, PP = 16, 32
FACC, FW, OR, XR = 48, 124, 8, 88
vF, vDO = 1, 4

A = Asm()
fill = deque()
live = {}
handles = {}


def alloc(name, ranges):
    for (a0, a1) in ranges:
        assert a1 <= LDS_BYTES
        for n, rs in live.items():
            for (b0, b1) in rs:
                assert a1 <= b0 or b1 <= a0, "LDS overlap %s vs %s" % (name, n)
    live[name] = ranges


def release(name):
    del live[name]


def is_free(a0, a1):
    return all(a1 <= b0 or b1 <= a0 for rs in live.values() for (b0, b1) in rs)


def pump(n=1):
    for _ in range(n):
        if fill:
            fill.popleft()()


def drain():
    while fill:
        fill.popleft()()


def chunks(text, n):
    ls = [l.strip() for l in text.strip().split('\n') if l.strip() and not l.strip().startswith(';')]
    out = []
    for k in range(0, len(ls), n):
        def f(part=ls[k:k + n]):
            for l in part:
                A.i(l)
        out.append(f)
    return out


nstamp = [0]
vST = [vT]
stamp_names = []
early = []
ESR = [80, 81, 82, 83, 84, 85, 86, 87]


def stamp(name="", clk=False):
    if not STAMPS:
        return
    k = nstamp[0]
    nstamp[0] += 1
    assert k < 64
    stamp_names.append(name)
    A.i("s_memtime s[100:101]" if clk else "s_memrealtime s[100:101]")
    A.wait(nl=0)
    A.i("v_mov_b32 v%d, s100" % vST[0])
    A.i("buffer_store_dword v%d, off, %s, s%d offset:%d" % (vST[0], srd(SRD_WS), sSTAMP, 4 * k))


def estamp(name):
    if not (STAMPS and EARLY):
        return
    A.i("s_memrealtime s[100:101]")
    A.wait(nl=0)
    A.i("s_mov_b32 s%d, s100" % ESR[len(early)])
    early.append(name)


def eflush():
    if STAMPS:
        A.i("v_mov_b32 v%d, s%d" % (vT, sTOK))
        A.i("buffer_store_dword v%d, off, %s, s%d" % (vT, srd(SRD_WS), sSTAMP))
        nstamp[0] = 1
        stamp_names.append("start")
        stamp("clk0", clk=True)
        stamp("clk0r")
    for i, name in enumerate(early):
        k = nstamp[0]
        nstamp[0] += 1
        stamp_names.append(name)
        A.i("v_mov_b32 v%d, s%d" % (vT, ESR[i]))
        A.i("buffer_store_dword v%d, off, %s, s%d offset:%d" % (vT, srd(SRD_WS), sSTAMP, 4 * k))


def dma(vaddr, sd, soff, m0base, m0add, off=0, sc1=False, mid=None):
    if m0base is not None:
        A.i("s_add_u32 m0, s%d, %d" % (m0base, m0add - off))
    if mid:
        A.many(mid)
    return A.i("buffer_load_dwordx4 v%d, %s, s%d offen%s%s lds" % (
        vaddr, srd(sd), soff, " offset:%d" % off if off else "", " sc1" if sc1 else ""))


def adv(s, step, wrap):
    return "s_add_u32 s%d, s%d, %d\ns_cmp_ge_u32 s%d, %d\ns_cselect_b32 s%d, %d, 0\ns_sub_u32 s%d, s%d, s%d" % (
        s, s, step, s, wrap, sT5, wrap, s, s, sT5)


def adv0(s, step, wrap):
    return "s_add_u32 s%d, s%d, %d\ns_cmp_eq_u32 s%d, %d\ns_cselect_b32 s%d, 0, s%d" % (s, s, step, s, wrap, s, s)


wslot = {}


def issue_w(j):
    sl = next(c for c in range(5) if is_free(8192 * c, 8192 * c + 8192))
    wslot[j] = sl
    o = 8192 * sl
    alloc("W%d" % j, [(o, o + 8192), (MOFF + o, MOFF + o + 8192)])
    first = j in (0, 10, 20)

    def f0():
        if j < 10:
            dma(vDQ, SRD_Q, sKQ, sW1K, o, mid=None if first else adv0(sKQ, 245760, 2457600))
        elif j < 20:
            dma(vDG, SRD_G, sKG, sW1K, o, mid=None if first else adv0(sKG, 196608, 1966080))
        else:
            m = ("" if first else adv(sKB, 16384, 81920) + "\n") + "s_add_u32 s%d, s%d, s%d" % (sD1, sD0, sKB)
            dma(vL, SRD_WS, sD1, sW1K, o, sc1=True, mid=m)

    def f1():
        if j < 10:
            h = dma(vDQ, SRD_Q, sKQ, sW1K, MOFF + o, off=128)
        elif j < 20:
            h = dma(vDG, SRD_U, sKG, sW1K, MOFF + o)
        else:
            h = dma(vL, SRD_WS, sD1, sW1K, MOFF + o, off=1024, sc1=True)
        handles["W%d" % j] = h
    return [f0, f1]


def issue_x(j):
    o = XB + 16384 * (j % 4)
    alloc("X%d" % j, [(o, o + 16384)])

    def f0():
        dma(vDX, SRD_X, sKX, sW1K, o, mid=None if j == 0 else adv0(sKX, 128, 1280))

    def f1():
        handles["X%d" % j] = dma(vDX2, SRD_X, sKX, sW1K, o + 8192)
    return [f0, f1]


rcell = {}


def issue_r(R, prefer=None):
    order = list(range(18))
    if R >= 38:
        order = order[::-1]
    c = next((c for c in order if is_free(CELLS[c], CELLS[c] + 8192)), None)
    if c is None:
        return None
    rcell[R] = CELLS[c]
    alloc("R%d" % R, [(CELLS[c], CELLS[c] + 8192)])

    def f():
        handles["R%d" % R] = dma(vL, SRD_WS, sWPO, sW1K, CELLS[c], sc1=True,
                                 mid="s_add_u32 s%d, s%d, 8192" % (sWPO, sWPO))
    return [f]


def mk_srd(b, ptr, nbytes):
    A.i("s_mov_b64 %s, %s" % (sr(b, 2), sr(ptr, 2)))
    A.i("s_mov_b32 s%d, %d" % (b + 2, nbytes))
    A.i("s_mov_b32 s%d, 0x00020000" % (b + 3))


def poll_issue(vaddr, vdst):
    return A.i("buffer_load_dword v%d, v%d, %s, 0 offen sc1" % (vdst, vaddr, srd(SRD_WS)))


def poll_check(vaddr, vdst, n=1, tokreg=None):
    tok = vdst if tokreg is None else tokreg
    Ld, Ll = A.newlabel("Lpd"), A.newlabel("Lpl")
    A.i("v_cmp_ne_u32 vcc, s%d, v%d" % (sTOK, tok))
    A.i("s_cbranch_vccz %s" % Ld)
    A.begin_cond()
    A.i("s_mov_b32 s%d, 0" % sT5)
    A.label(Ll)
    A.i("s_sleep 1")
    if n == 1:
        A.i("buffer_load_dword v%d, v%d, %s, 0 offen sc1" % (vdst, vaddr, srd(SRD_WS)))
    else:
        A.i("buffer_load_dwordx2 %s, v%d, %s, 0 offen sc1" % (vr(vdst, 2), vaddr, srd(SRD_WS)))
    A.i("s_add_u32 s%d, s%d, 1" % (sT5, sT5))
    A.wait(nv=0)
    A.i("v_cmp_ne_u32 vcc, s%d, v%d" % (sTOK, tok))
    A.i("s_cmp_gt_u32 s%d, 200000" % sT5)
    A.i("s_cbranch_scc1 %s" % Ld)
    A.i("s_cbranch_vccnz %s" % Ll)
    A.end_cond()
    A.label(Ld)


def publish_wg(off_expr):
    A.many(off_expr)
    A.i("s_cmp_eq_u32 s%d, 0" % sW)
    A.i("s_cselect_b32 s%d, s%d, 0x7ffffff0" % (sT4, sT4))
    A.i("v_mov_b32 v%d, s%d" % (vT, sTOK))
    A.i("buffer_store_dword v%d, off, %s, s%d sc1" % (vT, srd(SRD_WS), sT4))


def publish_wave(phase, vtmp):
    A.many(f"""
    s_lshl_b32 s{sT4}, s{sRT}, 4
    s_add_u32 s{sT4}, s{sT4}, s{sCG}
    s_lshl_b32 s{sT4}, s{sT4}, 1
    s_add_u32 s{sT4}, s{sT4}, s{sCH}
    s_lshl_b32 s{sT4}, s{sT4}, 2
    s_add_u32 s{sT4}, s{sT4}, {FLH_OFF + phase * 8192}
    v_mov_b32 v{vtmp}, s{sTOK}
    buffer_store_dword v{vtmp}, off, {srd(SRD_WS)}, s{sT4} sc1
    """)


def rnd_bf16(v):
    A.i("v_cvt_pk_bf16_f32 v%d, v%d, v%d" % (v, v, v))
    A.i("v_and_b32 v%d, 0xffff0000, v%d" % (v, v))


def udiv(dst, src, mul, sh):
    return "s_mul_i32 s%d, s%d, %d\ns_lshr_b32 s%d, s%d, %d" % (dst, src, mul, dst, dst, sh)


SD = E + 16
vLane = E


def prologue():
    A.i("s_cmp_ge_u32 s2, 256")
    A.i("s_cbranch_scc1 L_end")
    A.i("s_load_dwordx16 s[56:71], s[0:1], 0")
    A.i("s_load_dwordx4 s[72:75], s[0:1], 64")
    A.i("s_memrealtime s[76:77]")
    A.i("s_getpc_b64 s[78:79]")
    A.i("v_lshrrev_b32 v1, 6, v0")
    A.i("s_lshr_b32 s%d, s2, 3" % sT1)
    A.i("s_lshl_b32 s%d, s%d, 11" % (sT2, sT1))
    A.i("v_lshrrev_b32 v2, 5, v0")
    A.i("v_lshl_add_u32 v2, v2, 7, s%d" % sT2)
    A.i("v_min_u32 v2, CODE_SPAN, v2")
    A.i("v_and_b32 v%d, 63, v0" % vLane)
    A.i("v_readfirstlane_b32 s%d, v1" % sW)
    A.i("global_load_dword v255, v2, s[78:79]")
    l = vLane
    A.many(f"""
    s_and_b32 s{sT0}, s2, 7
    s_and_b32 s{sT2}, s{sT1}, 7
    s_lshr_b32 s{sT3}, s{sT1}, 3
    s_and_b32 s{sRB}, s{sT0}, 1
    s_lshl_b32 s{sRB}, s{sRB}, 3
    s_add_u32 s{sRB}, s{sRB}, s{sT2}
    s_lshr_b32 s{sCG}, s{sT0}, 1
    s_lshl_b32 s{sCG}, s{sCG}, 2
    s_add_u32 s{sCG}, s{sCG}, s{sT3}
    s_lshl_b32 s{sW1K}, s{sW}, 10
    s_mul_i32 s{sKB}, s{sCG}, 3
    s_add_u32 s{sKB}, s{sKB}, s{sRB}
    s_mul_i32 s{sT4}, s{sKB}, 205
    s_lshr_b32 s{sT4}, s{sT4}, 11
    s_mul_i32 s{sT4}, s{sT4}, 10
    s_sub_u32 s{sKB}, s{sKB}, s{sT4}
    s_lshl_b32 s{sKX}, s{sKB}, 7
    s_mul_i32 s{sKQ}, s{sKB}, 245760
    v_lshrrev_b32 v2, 3, v{l}
    v_lshrrev_b32 v3, 4, v{l}
    s_lshl_b32 s{sT4}, s{sW}, 2
    v_add_u32 v4, s{sT4}, v3
    v_xor_b32 v4, v4, v{l}
    v_and_b32 v4, 7, v4
    v_lshlrev_b32 v4, 4, v4
    s_lshl_b32 s{sT4}, s{sW}, 3
    v_add_u32 v2, s{sT4}, v2
    s_mul_i32 s{sT4}, s{sRB}, {128*1280}
    v_mul_u32_u24 v5, 1280, v2
    v_add3_u32 v{vDX}, v4, v5, s{sT4}
    v_add_u32 v{vDX2}, {64*1280}, v{vDX}
    v_lshlrev_b32 v3, 2, v3
    v_xor_b32 v3, v3, v{l}
    v_and_b32 v3, 7, v3
    v_lshlrev_b32 v3, 4, v3
    s_lshl_b32 s{sT4}, s{sCG}, 8
    v_mul_u32_u24 v5, 3840, v2
    v_add3_u32 v{vDQ}, v3, v5, s{sT4}
    s_mov_b32 s{SRD_X+2}, {2048*1280}
    s_mov_b32 s{SRD_X+3}, 0x00020000
    s_cmp_eq_u32 s{sCG}, 15
    s_cselect_b32 s{SRD_Q+2}, 0, {640*3840}
    s_mov_b32 s{SRD_Q+3}, 0x00020000
    s_mov_b64 {sr(SRD_X,2)}, s[56:57]
    s_mov_b64 {sr(SRD_Q,2)}, s[58:59]
    """)
    estamp("karg")
    x0, w0 = issue_x(0), issue_w(0)
    x0[0](); w0[0](); x0[1](); w0[1]()
    estamp("iss0")
    A.many(f"""
    s_and_b32 s{sRU}, s{sW}, 3
    s_lshr_b32 s{sCH}, s{sW}, 2
    s_mul_i32 s{sT4}, s{sCG}, 192
    s_and_b32 s{sT5}, s{sCG}, 1
    s_lshl_b32 s{sT5}, s{sT5}, 6
    s_add_u32 s{sT4}, s{sT4}, s{sT5}
    v_mul_u32_u24 v5, 3072, v2
    v_add3_u32 v{vDG}, v3, v5, s{sT4}
    v_lshlrev_b32 v{vL}, 4, v{l}
    s_lshl_b32 s{sT4}, s{sRB}, 4
    s_add_u32 s{sT4}, s{sT4}, s{sCG}
    s_lshl_b32 s{sT4}, s{sT4}, 3
    s_add_u32 s{sROW}, s{sT4}, s{sW}
    s_mul_i32 s{sT4}, s{sROW}, 1280
    v_mov_b32 v{SD+4}, 0
    v_mov_b32 v{SD+5}, 0
    v_mov_b32 v{SD+6}, 0
    v_mov_b32 v{SD+7}, 0
    buffer_load_dwordx4 {vr(SD,4)}, v{vL}, {srd(SRD_X)}, s{sT4} offen
    s_mov_b64 exec, 0xffff
    buffer_load_dwordx4 {vr(SD+4,4)}, v{vL}, {srd(SRD_X)}, s{sT4} offen offset:1024
    s_mov_b64 exec, -1
    """)
    mk_srd(SRD_DBG, 72, 256)
    A.many(f"""
    s_or_b32 s{sT4}, s2, s{sW}
    s_cmp_eq_u32 s{sT4}, 0
    s_cselect_b32 s{sT4}, 0, 0x1000
    s_or_b32 s{sT5}, s76, 1
    v_mov_b32 v2, s{sT5}
    buffer_store_dword v2, off, {srd(SRD_DBG)}, s{sT4} sc1
    """)
    for j in (1, 2):
        x0, w0 = issue_x(j), issue_w(j)
        x0[0](); w0[0](); x0[1](); w0[1]()
    estamp("iss2")
    A.many(f"""
    s_and_b32 s{sRG}, s{sT0}, 1
    s_lshl_b32 s{sRG}, s{sRG}, 1
    s_bfe_u32 s{sT4}, s{sT0}, 0x10001
    s_add_u32 s{sRG}, s{sRG}, s{sT4}
    s_lshl_b32 s{sRG}, s{sRG}, 3
    s_add_u32 s{sRG}, s{sRG}, s{sT2}
    s_lshr_b32 s{sCG8}, s{sT0}, 2
    s_lshl_b32 s{sCG8}, s{sCG8}, 2
    s_add_u32 s{sCG8}, s{sCG8}, s{sT3}
    s_lshl_b32 s{sRT}, s{sRB}, 2
    s_add_u32 s{sRT}, s{sRT}, s{sRU}
    s_mul_i32 s{sKG}, s{sKB}, 196608
    """)
    A.many(f"""
    v_lshrrev_b32 v1, 5, v{l}
    v_lshlrev_b32 v1, 10, v1
    v_bfe_u32 v2, v{l}, 2, 2
    v_lshl_add_u32 v1, v2, 7, v1
    v_lshrrev_b32 v2, 1, v2
    v_xor_b32 v2, s{sCH}, v2
    v_lshl_add_u32 v1, v2, 6, v1
    v_bfe_u32 v2, v{l}, 4, 1
    v_mul_u32_u24 v2, {MOFF}, v2
    v_and_b32 v3, 3, v{l}
    v_lshl_add_u32 v1, v3, 3, v1
    v_add_u32 v{vT}, v1, v2
    """)
    for i in range(4):
        A.i("s_xor_b32 s%d, s%d, %d" % (sT4, sRU, i))
        A.i("s_lshl_b32 s%d, s%d, 11" % (sT4, sT4))
        A.i("v_add_u32 v%d, s%d, v%d" % (vWA + i, sT4, vT))
    A.many(f"""
    v_bfe_u32 v{TMP}, v{l}, 1, 3
    v_lshrrev_b32 v{TMP+1}, 5, v{l}
    v_xor_b32 v{TMP}, v{TMP}, v{TMP+1}
    s_lshl_b32 s{sT4}, s{sRU}, 1
    v_xor_b32 v{TMP}, s{sT4}, v{TMP}
    v_lshlrev_b32 v{TMP}, 4, v{TMP}
    v_and_b32 v{TMP+1}, 31, v{l}
    v_lshl_add_u32 v{TMP}, v{TMP+1}, 7, v{TMP}
    s_lshl_b32 s{sT4}, s{sRU}, 12
    s_add_u32 s{sT4}, s{sT4}, {XB}
    v_add_u32 v{TMP}, s{sT4}, v{TMP}
    """)
    for i in range(4):
        A.i("v_xor_b32 v%d, %d, v%d" % (vXA + i, 32 * i, TMP))
    x0, w0 = issue_x(3), issue_w(3)
    x0[0](); w0[0](); x0[1](); w0[1]()
    A.i("buffer_load_dword v%d, off, %s, 0 sc1" % (vTOKV, srd(SRD_DBG)))
    mk_srd(SRD_G, 64, 640 * 3072)
    mk_srd(SRD_U, 66, 640 * 3072)
    mk_srd(SRD_OUT, 70, 2048 * 1280)
    mk_srd(SRD_WS, 74, WS_BYTES)
    if STAMPS:
        A.i("s_lshl_b32 s%d, s2, 3" % sSTAMP)
        A.i("s_add_u32 s%d, s%d, s%d" % (sSTAMP, sSTAMP, sW))
        A.i("s_lshl_b32 s%d, s%d, 8" % (sSTAMP, sSTAMP))
        A.i("s_add_u32 s%d, s%d, %d" % (sSTAMP, sSTAMP, STAMP_OFF))
        A.i("s_mov_b32 s%d, s76" % sTOK)
    A.many(f"""
    v_lshrrev_b32 v{TMP}, 2, v{l}
    v_and_b32 v{TMP}, 4, v{TMP}
    v_xor_b32 v{TMP}, v{TMP}, v{l}
    v_and_b32 v{TMP}, 7, v{TMP}
    v_cmp_eq_u32 vcc, 0, v{TMP}
    v_mov_b32 v{TMP+1}, 0x3f803f80
    s_mov_b32 s{sHI}, 0
    s_mov_b32 s{sHI+1}, -1
    s_mov_b32 s{sE40}, -1
    s_mov_b32 s{sE40+1}, 0xff
    v_cndmask_b32 v{SEL}, 0, v{TMP+1}, vcc
    v_cndmask_b32 v{SEL+1}, 0, v{TMP+1}, vcc
    v_cndmask_b32 v{SEL+2}, 0, v{TMP+1}, vcc
    v_cndmask_b32 v{SEL+3}, 0, v{TMP+1}, vcc
    """)
    pack_issue()
    estamp("isspk")
    A.many(f"""
    s_add_u32 s{sKB}, s{sKB}, s{sCH}
    s_cmp_eq_u32 s{sKB}, 10
    s_cselect_b32 s{sKB}, 0, s{sKB}
    s_lshl_b32 s{sKB}, s{sKB}, 13
    s_mul_i32 s{sD0}, s{sCG}, {GBS}
    s_lshl_b32 s{sT4}, s{sRU}, 11
    s_add_u32 s{sD0}, s{sD0}, s{sT4}
    s_add_u32 s{sD0}, s{sD0}, {GB_OFF}
    s_mul_i32 s{sWPO}, s{sCG8}, {WPS}
    s_add_u32 s{sWPO}, s{sWPO}, s{sW1K}
    s_add_u32 s{sWPO}, s{sWPO}, {WP_OFF - 8192}
    v_mov_b32 v{E+1}, 0
    v_mov_b32 v{E+2}, 0
    """)


def pack_issue():
    l = vLane
    U, T, L, KQ, ST, ROW, AA, BB, CC, PI, EE = sT0, sT1, sT2, sT3, sT4, sT5, sD0, sD1, sD2, sD3, sWPO
    nib = 0
    for st, v in enumerate([0, 1, 4, 5, 6, 7, 10, 11, 2, 3, 8, 9]):
        nib |= v << (4 * st)
    A.many(f"""
    s_lshl_b32 s{U}, s2, 2
    s_lshr_b32 s{T}, s{sW}, 1
    s_add_u32 s{U}, s{U}, s{T}
    s_min_u32 s{U}, s{U}, 999
    s_and_b32 s{EE}, s{sW}, 1
    {udiv(T, U, 6554, 16)}
    s_mul_i32 s{L}, s{T}, 10
    s_sub_u32 s{L}, s{U}, s{L}
    {udiv(KQ, T, 241, 12)}
    s_mul_i32 s{ST}, s{KQ}, 17
    s_sub_u32 s{ST}, s{T}, s{ST}
    s_lshl_b32 s{T}, s{L}, 1
    s_add_u32 s{T}, s{T}, s{EE}
    s_lshl_b32 s{T}, s{T}, 1
    {udiv(sPD0, T, 205, 10)}
    s_add_u32 s{AA}, s{T}, 1
    {udiv(sPD1, AA, 205, 10)}
    s_mul_i32 s{sPD0}, s{sPD0}, {WPS - 20480}
    s_mul_i32 s{sPD1}, s{sPD1}, {WPS - 20480}
    s_mul_i32 s{AA}, s{ST}, 5
    s_add_u32 s{T}, s{T}, s{AA}
    s_lshl_b32 s{T}, s{T}, 2
    s_add_u32 s{T}, s{T}, s{KQ}
    s_lshl_b32 s{T}, s{T}, 10
    s_add_u32 s{T}, s{T}, {WP_OFF}
    s_add_u32 s{sPD0}, s{sPD0}, s{T}
    s_add_u32 s{sPD1}, s{sPD1}, s{T}
    s_add_u32 s{sPD1}, s{sPD1}, 4096
    s_mov_b32 s78, {nib & 0xffffffff}
    s_mov_b32 s79, {nib >> 32}
    s_lshl_b32 s{T}, s{ST}, 2
    s_lshr_b64 s[78:79], s[78:79], s{T}
    s_and_b32 s78, s78, 15
    s_mul_i32 s{ROW}, s{KQ}, 12
    s_add_u32 s{ROW}, s{ROW}, s78
    s_lshl_b32 s{ROW}, s{ROW}, 5
    s_lshl_b32 s{T}, s{KQ}, 2
    s_add_u32 s{T}, s{T}, s{ST}
    s_mul_i32 s{T}, s{T}, 40
    s_cmp_eq_u32 s{ST}, 16
    s_mov_b32 s78, 480
    s_cmov_b32 s78, {480 + 144}
    s_cselect_b32 s{AA}, 80, 24
    s_cselect_b32 s{BB}, 4, 8
    s_cselect_b32 s{CC}, 40, 4
    s_sub_u32 s{T}, s{T}, s78
    s_cmp_ge_u32 s{ST}, 12
    s_cselect_b32 s{ROW}, s{T}, s{ROW}
    s_cselect_b32 s{AA}, s{AA}, 16
    s_cselect_b64 {sr(SRD_PK,2)}, s[60:61], s[68:69]
    s_mov_b32 s{SRD_PK+2}, {1536*1280}
    s_cmov_b32 s{SRD_PK+2}, {640*1280}
    s_mov_b32 s{SRD_PK+3}, 0x00020000
    s_lshl_b32 s{L}, s{L}, 7
    s_sub_u32 s{KQ}, s{U}, 680
    {udiv(T, KQ, 1639, 16)}
    s_mul_i32 s{ST}, s{T}, 40
    s_sub_u32 s{ST}, s{KQ}, s{ST}
    s_mul_i32 s78, s{T}, 384
    s_add_u32 s78, s78, 128
    s_lshl_b32 s{T}, s{T}, 1
    s_add_u32 s{T}, s{T}, s{EE}
    s_mul_i32 s{T}, s{T}, {GBS}
    s_lshl_b32 s79, s{ST}, 11
    s_add_u32 s{T}, s{T}, s79
    s_add_u32 s{T}, s{T}, {GB_OFF}
    s_add_u32 s79, s{T}, 512
    s_lshl_b32 s{ST}, s{ST}, 4
    s_cmp_eq_u32 s{EE}, 1
    s_cselect_b64 s[76:77], s[66:67], s[64:65]
    s_cmp_ge_u32 s{U}, 680
    s_cselect_b64 {sr(SRD_PK,2)}, s[76:77], {sr(SRD_PK,2)}
    s_cselect_b32 s{SRD_PK+2}, {640*3072}, s{SRD_PK+2}
    s_cselect_b32 s{sPD0}, s{T}, s{sPD0}
    s_cselect_b32 s{sPD1}, s79, s{sPD1}
    s_cselect_b32 s{L}, s78, s{L}
    s_cselect_b32 s{ROW}, s{ST}, s{ROW}
    s_cselect_b32 s{AA}, 0, s{AA}
    s_cselect_b32 s{BB}, 8, s{BB}
    s_cselect_b32 s{CC}, 4, s{CC}
    s_mov_b32 s{PI}, 1280
    s_cmov_b32 s{PI}, 3072
    s_cselect_b32 s76, 2, 4
    s_cselect_b32 s77, 4, 1
    s_cselect_b32 s78, 1, 2
    s_cselect_b32 s79, 2, 1
    s_lshl_b64 s[76:77], s[76:77], 9
    s_lshl_b64 s[78:79], s[78:79], 9
    s_mul_i32 s{AA}, s{AA}, s{EE}
    s_add_u32 s{ROW}, s{ROW}, s{AA}
    s_mul_i32 s{ROW}, s{ROW}, s{PI}
    s_add_u32 s{ROW}, s{ROW}, s{L}
    s_mul_i32 s{BB}, s{BB}, s{PI}
    s_add_u32 s{BB}, s{BB}, s{ROW}
    v_lshrrev_b32 v{TMP}, 5, v{l}
    v_bfe_u32 v{TMP+1}, v{l}, 3, 2
    v_mad_u32_u24 v{TMP+1}, v{TMP}, s{CC}, v{TMP+1}
    v_and_b32 v{TMP+2}, 7, v{l}
    v_lshlrev_b32 v{TMP+2}, 4, v{TMP+2}
    v_mad_u32_u24 v{TMP+1}, v{TMP+1}, s{PI}, v{TMP+2}
    s_mul_i32 s{T}, s{sCH}, {MOFF}
    s_lshl_b32 s{KQ}, s{sRU}, 11
    s_add_u32 s{KQ}, s{KQ}, s{T}
    """)
    alloc("PK", [(32768, 40960), (MOFF + 32768, MOFF + 40960)])
    dma(TMP + 1, SRD_PK, ROW, KQ, 32768, mid=f"s_lshr_b32 s{ST}, s{sRU}, 1")
    handles["PK"] = dma(TMP + 1, SRD_PK, BB, KQ, 32768 + 1024, mid=f"s_lshl_b32 s{ST}, s{ST}, 12")
    A.many(f"""
    s_add_u32 s{T}, s{T}, s{ST}
    s_lshl_b32 s{EE}, s{EE}, 6
    s_add_u32 s{T}, s{T}, s{EE}
    s_add_u32 s{T}, s{T}, 32768
    v_mul_u32_u24 v{vPKR}, s76, v{TMP}
    v_bfe_u32 v{TMP+1}, v{l}, 4, 1
    v_mad_u32_u24 v{vPKR}, v{TMP+1}, s77, v{vPKR}
    v_bfe_u32 v{TMP+1}, v{l}, 2, 2
    v_lshl_add_u32 v{vPKR}, v{TMP+1}, 7, v{vPKR}
    v_and_b32 v{TMP+1}, 3, v{l}
    v_lshl_add_u32 v{vPKR}, v{TMP+1}, 3, v{vPKR}
    v_add_u32 v{vPKR}, s{T}, v{vPKR}
    v_add_u32 v{vPKR+1}, s78, v{vPKR}
    v_and_b32 v{TMP+1}, 0x1f0, v{vL}
    v_mad_u32_u24 v{vPKS}, v{TMP}, s79, v{TMP+1}
    """)


def pack_fillers():
    D = E + 8

    def rd():
        for t in range(2):
            for half in range(2):
                A.i("ds_read_b64_tr_b16 %s, v%d offset:%d" % (vr(D + 4 * t + 2 * half, 2), vPKR + half, 32 * t))

    def st():
        for t in range(2):
            handles["pkst"] = A.i("buffer_store_dwordx4 %s, v%d, %s, s%d offen sc1" % (vr(D + 4 * t, 4), vPKS, srd(SRD_WS), sPD0 + t))
    return rd, st


def row_stats():
    vS, vQ = E + 1, E + 2
    A.i("s_mov_b32 s%d, 0x3f803f80" % sT0)
    for r in range(8):
        A.i("v_dot2c_f32_bf16 v%d, s%d, v%d" % (vS, sT0, SD + r))
        A.i("v_dot2c_f32_bf16 v%d, v%d, v%d" % (vQ, SD + r, SD + r))
    A.i("v_permlane32_swap_b32 v%d, v%d" % (vS, vQ))
    A.i("v_add_f32 v%d, v%d, v%d" % (vS, vS, vQ))
    for k in (1, 2, 4, 8):
        A.i("v_add_f32_dpp v%d, v%d, v%d row_ror:%d row_mask:0xf bank_mask:0xf" % (vS, vS, vS, k))
    for k in range(4):
        A.i("v_readlane_b32 s%d, v%d, %d" % (sT0 + k, vS, 16 * k))
    A.many(f"""
    v_mov_b32 v{vS}, s{sT0}
    v_mov_b32 v{vQ}, s{sT2}
    v_add_f32 v{vS}, s{sT1}, v{vS}
    v_add_f32 v{vQ}, s{sT3}, v{vQ}
    v_mul_f32 v{vS}, {1.0/640!r}, v{vS}
    v_mul_f32 v{vQ}, {1.0/640!r}, v{vQ}
    v_fma_f32 v{vQ}, -v{vS}, v{vS}, v{vQ}
    v_max_f32 v{vQ}, 0, v{vQ}
    """)
    rnd_bf16(vQ)
    A.i("v_add_f32 v%d, 0x3727c5ac, v%d" % (vQ, vQ))
    rnd_bf16(vQ)
    A.i("v_sqrt_f32 v%d, v%d" % (vQ, vQ))
    A.i("v_sub_f32 v%d, 0, v%d" % (vS, vS))
    A.i("v_cvt_pk_bf16_f32 v%d, v%d, v%d" % (vGR, vS, vQ))


def get_token():
    Ld, Ll = A.newlabel("Ltd"), A.newlabel("Ltl")
    A.i("v_readfirstlane_b32 s%d, v%d" % (sTOK, vTOKV))
    A.i("s_cmp_lg_u32 s%d, 0" % sTOK)
    A.i("s_cbranch_scc1 %s" % Ld)
    A.begin_cond()
    A.i("s_mov_b32 s%d, 0" % sT5)
    A.label(Ll)
    A.i("buffer_load_dword v%d, off, %s, 0 sc1" % (vTOKV, srd(SRD_DBG)))
    A.i("s_add_u32 s%d, s%d, 1" % (sT5, sT5))
    A.wait(nv=0)
    A.i("v_readfirstlane_b32 s%d, v%d" % (sTOK, vTOKV))
    A.i("s_cmp_gt_u32 s%d, 200000" % sT5)
    A.i("s_cbranch_scc1 %s" % Ld)
    A.i("s_cmp_eq_u32 s%d, 0" % sTOK)
    A.i("s_cbranch_scc1 %s" % Ll)
    A.end_cond()
    A.label(Ld)


def pub_stats():
    get_token()
    A.many(f"""
    v_mov_b32 v{vGR+1}, s{sTOK}
    s_lshl_b32 s{sT4}, s{sROW}, 3
    s_add_u32 s{sT4}, s{sT4}, {STAT_OFF}
    buffer_store_dwordx2 {vr(vGR,2)}, off, {srd(SRD_WS)}, s{sT4} sc1
    """)


def xf(j, i):
    return XF + 16 * j + 4 * i


def ringreg(n):
    return RING + 4 * (n % 5)


def frag_read(n):
    J, p = divmod(n, 8)
    i, hi = p & 3, p >> 2
    d = ringreg(n)
    sl = wslot[J] * 8192
    if J < 20:
        for half in range(2):
            A.i("ds_read_b64_tr_b16 %s, v%d offset:%d" % (vr(d + 2 * half, 2), vWA + i, sl + half * 512 + hi * 32))
    else:
        A.i("ds_read_b128 %s, v%d offset:%d" % (vr(d, 4), vWA + i, sl + hi * 4096))
    if J < 10 and hi == 0:
        A.i("ds_read_b128 %s, v%d offset:%d" % (vr(xf(J, i), 4), vXA + i, 16384 * (J % 4)))


def acc_of(J, hi):
    return (A0, A1)[hi] if J < 10 else ((A2, A0)[hi] if J < 20 else A1)


def main_mfma(n):
    J, p = divmod(n, 8)
    i, hi = p & 3, p >> 2
    a = acc_of(J, hi)
    first = (J in (0, 10) and i == 0) or n == 160
    x = xf(J % 10, i) if J < 20 else xf(2 * (J - 20) + hi, i)
    A.i("v_mfma_f32_32x32x16_bf16 %s, %s, %s, %s" % (vr(a, 16), vr(ringreg(n), 4), vr(x, 4), "0" if first else vr(a, 16)))


def cs_mfma(n):
    J, p = divmod(n, 8)
    c = CS1 if p else CS0
    A.i("v_mfma_f32_16x16x32_bf16 %s, %s, %s, %s" % (vr(c, 4), vr(SEL, 4), vr(ringreg(n), 4), "0" if J in (0, 10, 20) else vr(c, 4)))


vSC = TMP
vG205 = TMP + 1


def qkv_epi(b, b2):
    L = []
    for q in range(4):
        t = ""
        for r in range(4 * q, 4 * q + 4):
            t += "v_mul_f32 v%d, v%d, v%d\n" % (b + r, vSC, b + r)
        L += chunks(t, 4)
        t = ""
        for r in range(2 * q, 2 * q + 2):
            t += "v_cvt_pk_bf16_f32 v%d, v%d, v%d\n" % (b + r, b + 2 * r, b + 2 * r + 1)
        if q % 2 == 1:
            mat = q // 2
            d = 8 * mat + 2 * b2
            t = f"""
            s_add_u32 s{sT0}, s{sD2}, {d}
            s_mul_i32 s{sT1}, s{sT0}, 205
            v_add_u32 v{TMP+2}, s{sT1}, v{vG205}
            {t}
            v_lshrrev_b32 v{TMP+2}, 10, v{TMP+2}
            s_lshl_b32 s{sT0}, s{sT0}, 9
            s_add_u32 s{sT0}, s{sT0}, s{sD3}
            s_mov_b32 s{sT1}, {HPS - 2560}
            v_mad_u32_u24 v{TMP+2}, v{TMP+2}, s{sT1}, v{vL}
            v_permlane32_swap_b32 v{b+4*mat}, v{b+4*mat+2}
            v_permlane32_swap_b32 v{b+4*mat+1}, v{b+4*mat+3}
            """

            def f(t=t, mat=mat):
                A.many(t)
                handles["qst"] = A.i("buffer_store_dwordx4 %s, v%d, %s, s%d offen sc1" % (vr(b + 4 * mat, 4), TMP + 2, srd(SRD_PK), sT0))
            L.append(f)
        else:
            L += chunks(t, 4)
    return L


def gu_epi(b, off, hname):
    L = []
    for q in range(4):
        r = 2 * q
        L += chunks(f"""
        v_max_f32 v{b+r}, 0, v{b+r}
        v_mul_f32 v{b+8+r}, v{vSC}, v{b+8+r}
        v_max_f32 v{b+r+1}, 0, v{b+r+1}
        v_mul_f32 v{b+9+r}, v{vSC}, v{b+9+r}
        v_mul_f32 v{b+r}, v{b+r}, v{b+8+r}
        v_mul_f32 v{b+r+1}, v{b+r+1}, v{b+9+r}
        v_cvt_pk_bf16_f32 v{b+q}, v{b+r}, v{b+r+1}
        """, 4)

    def f():
        handles[hname] = A.i("buffer_store_dwordx4 %s, v%d, %s, s%d offen offset:%d sc1" % (vr(b, 4), vL, srd(SRD_WS), sD2, off))
    L.append(f)
    return L


def ho_base(s, step_expr):
    return f"""
    s_mul_i32 s{s}, s{sRT}, {HO_RT}
    s_lshr_b32 s{sT0}, s{sCG}, 2
    s_mul_i32 s{sT0}, s{sT0}, 34816
    s_add_u32 s{s}, s{s}, s{sT0}
    s_and_b32 s{sT0}, s{sCG}, 3
    {step_expr}
    s_add_u32 s{s}, s{s}, s{sT1}
    """


def one(text):
    return lambda: A.many(text)


def kv_fillers():
    va = TMP + 3
    L = [one(f"""
    v_lshrrev_b32 v{va}, 3, v{vL}
    v_and_b32 v{va}, 64, v{va}
    v_xor_b32 v{va}, v{va}, v{vL}
    s_lshl_b32 s{sT0}, s{sRB}, 2
    s_add_u32 s{sT0}, s{sT0}, s{sW}
    s_sub_i32 s{sT0}, s{sT0}, 8
    s_max_i32 s{sT0}, s{sT0}, 0
    s_mul_i32 s{sT0}, s{sT0}, 7680
    s_mul_i32 s{sT1}, s{sCG}, {HPS}
    s_add_u32 s{sD2}, s{sT0}, s{sT1}
    s_add_u32 s{sD2}, s{sD2}, 2560
    s_mul_i32 s{sD3}, s{sW}, {KVS}
    """)]
    for pc in range(4):
        L.append(lambda pc=pc: dma(va, SRD_WS, sD2, sD3, XB + 1024 * pc, off=1024 * pc, sc1=True))
    L.append(lambda: dma(va, SRD_WS, sD2, sD3, XB + 4096, sc1=True, mid="s_add_u32 s%d, s%d, 4096" % (sD2, sD2)))
    L.append(one(f"""
    s_mul_i32 s{sT0}, s{sRT}, 7680
    s_mul_i32 s{sT1}, s{sCG}, {HPS}
    s_add_u32 s{sD2}, s{sT0}, s{sT1}
    s_lshl_b32 s{sT0}, s{sCH}, 11
    s_add_u32 s{sD2}, s{sD2}, s{sT0}
    s_add_u32 s{sD2}, s{sD2}, 2560
    s_mul_i32 s{sD3}, s{sRU}, {KVS}
    s_add_u32 s{sD3}, s{sD3}, s{sT0}
    """))
    for pc in range(3):
        def f(pc=pc):
            handles["KV"] = dma(va, SRD_WS, sD2, sD3, XB + 8 * KVS + 1024 * pc, off=1024 * pc, sc1=True)
        L.append(f)
    return L


def pad_fillers():
    t = TMP + 3
    return [one(f"""
    v_lshrrev_b32 v{TMP+2}, 4, v{vL}
    v_min_u32 v{TMP+2}, 11, v{TMP+2}
    s_lshl_b32 s{sT0}, s{sRB}, 2
    s_sub_i32 s{sT0}, 8, s{sT0}
    v_cmp_gt_i32 vcc, s{sT0}, v{TMP+2}
    v_mov_b32 v{t}, 0x3f800000
    v_mov_b32 v{t+1}, 0x3f80fe80
    """), one(f"""
    v_cndmask_b32 v{t}, v{t}, v{t+1}, vcc
    v_mov_b32 v{t+1}, 0
    v_mov_b32 v{t+2}, 0x3f803f80
    v_mov_b32 v{t+3}, 0x3f803f80
    v_mul_u32_u24 v{TMP+2}, {KVS}, v{TMP+2}
    v_add_u32 v{TMP+2}, {XB + 5120}, v{TMP+2}
    ds_write_b128 v{TMP+2}, {vr(t,4)}
    """)]


def mask_fillers():
    t = TMP + 2
    L = [one(f"""
    v_bfe_u32 v{t}, v{vL}, 4, 5
    v_lshrrev_b32 v{t+1}, 9, v{vL}
    v_lshlrev_b32 v{t+1}, 2, v{t+1}
    v_sub_u32 v{t}, v{t}, v{t+1}
    """)]
    for q in range(4):
        L.append(one("\n".join("v_cmp_gt_i32 %s, %d, v%d" % (sr(sMASK + 2 * r, 2), 8 * (r // 4) + r % 4, t)
                               for r in range(4 * q, 4 * q + 4))))
    return L


def att_prep_fillers():
    t0, t1, t2 = 121, 122, 123
    L = [one(f"""
    s_mul_i32 s{sT0}, s{sRT}, 7680
    s_mul_i32 s{sT1}, s{sCG}, {HPS}
    s_add_u32 s{sT0}, s{sT0}, s{sT1}
    s_mul_i32 s{sT1}, s{sCH}, 1536
    s_add_u32 s{sT1}, s{sT1}, s{sT0}
    v_and_b32 v{t0}, 0x1f0, v{vL}
    buffer_load_dwordx4 {vr(QM,4)}, v{vL}, {srd(SRD_WS)}, s{sT1} offen sc1
    s_lshl_b32 s{sT1}, s{sCH}, 3
    s_add_u32 s{sT1}, s{sT1}, s{sT0}
    buffer_load_dwordx2 {vr(QT,2)}, v{t0}, {srd(SRD_WS)}, s{sT1} offen offset:1024 sc1
    """)]
    L += chunks(f"""
    s_mul_i32 s{sD3}, s{sRU}, {KVS}
    s_add_u32 s{sD3}, s{sD3}, {XB}
    v_lshrrev_b32 v{t1}, 9, v{vL}
    v_xor_b32 v{t2}, s{sCH}, v{t1}
    v_lshlrev_b32 v{t2}, 6, v{t2}
    v_xor_b32 v{t2}, v{t2}, v{vL}
    s_mul_i32 s{sT0}, s{sCH}, 1536
    s_add_u32 s{sT0}, s{sT0}, s{sD3}
    v_add_u32 v{vKA}, s{sT0}, v{t2}
    s_lshl_b32 s{sT0}, s{sCH}, 3
    s_add_u32 s{sT0}, s{sT0}, 1024
    v_add_u32 v{vKT}, s{sT0}, v{t0}
    v_mov_b32 v{t2}, 5120
    v_cndmask_b32 v{vKT}, v{vKT}, v{t2}, {sr(sHI,2)}
    v_add_u32 v{vKT}, s{sD3}, v{vKT}
    """, 9)
    L += chunks(f"""
    v_bfe_u32 v{t0}, v{vL}, 5, 1
    s_mul_i32 s{sT0}, s{sCH}, 3
    v_add_u32 v{t0}, s{sT0}, v{t0}
    v_bfe_u32 v{t2}, v{vL}, 4, 1
    v_and_b32 v{vVA+1}, 0x130, v{vL}
    v_cmp_lt_u32 vcc, 0xff, v{vVA+1}
    v_mov_b32 v{vVA+2}, s{sCH}
    v_mov_b32 v{vVA+3}, 128
    v_cndmask_b32 v{t0}, v{t0}, 2, vcc
    v_cndmask_b32 v{t2}, v{t2}, v{vVA+2}, vcc
    """, 10) + chunks(f"""
    v_cmp_lt_u32 vcc, 0x100, v{vVA+1}
    v_lshlrev_b32 v{vVA}, 3, v{t2}
    v_lshl_add_u32 v{vVA}, v{t0}, 9, v{vVA}
    v_xor_b32 v{t0}, v{t0}, v{t1}
    v_and_b32 v{t0}, 1, v{t0}
    v_xor_b32 v{t0}, 1, v{t0}
    v_lshl_add_u32 v{vVA}, v{t0}, 6, v{vVA}
    v_bfe_u32 v{t0}, v{vL}, 6, 2
    v_lshl_add_u32 v{vVA}, v{t0}, 4, v{vVA}
    v_mov_b32 v{t0}, {5128 - 2560}
    v_cndmask_b32 v{vVA}, v{vVA}, v{t0}, vcc
    v_cndmask_b32 v{t0}, v{vVA+3}, 0, vcc
    s_add_u32 s{sT0}, s{sD3}, 2560
    v_add_u32 v{vVA}, s{sT0}, v{vVA}
    v_add_u32 v{vVA+1}, v{vVA}, v{t0}
    v_add_u32 v{vVA+2}, v{vVA+1}, v{t0}
    v_add_u32 v{vVA+3}, v{vVA+2}, v{t0}
    """, 17)
    t = "v_mov_b32 v%d, 0xffff0000\n" % t0
    for j in range(8):
        t += "v_cndmask_b32 v%d, 0, v%d, %s\n" % (PM + j, t0, sr(sMASK + 2 * (2 * j + 1), 2))
        t += "v_cndmask_b32 v%d, v%d, -1, %s\n" % (PM + j, PM + j, sr(sMASK + 2 * (2 * j), 2))
    L += chunks(t, 5)
    L += chunks(f"""
    s_lshl_b32 s{sT0}, s{sRG}, 1
    s_add_u32 s{sT0}, s{sT0}, s{sCH}
    s_mul_i32 s{sT1}, s{sT0}, {HO_RT}
    s_mul_i32 s{sT2}, s{sRU}, 34816
    s_add_u32 s{sT1}, s{sT1}, s{sT2}
    s_add_u32 s{sT1}, s{sT1}, {HO_OFF}
    v_and_b32 v{t0}, 0x300, v{vL}
    v_add3_u32 v{vHA}, v{t0}, v{vL}, s{sT1}
    s_lshl_b32 s{sT0}, s{sT0}, 7
    s_lshl_b32 s{sT2}, s{sRU}, 5
    s_add_u32 s{sT0}, s{sT0}, s{sT2}
    s_add_u32 s{sT0}, s{sT0}, {FLH_OFF}
    v_bfe_u32 v{t0}, v{vL}, 4, 3
    v_lshl_add_u32 v{vPA}, v{t0}, 2, s{sT0}
    """, 14)
    return L


KO = [8, 0, 1, 2, 3, 4, 5, 6, 7]


def k_read(k):
    t = KO[k]
    A.i("ds_read_b128 %s, v%d offset:%d" % (vr(KMR + 4 * (k % 3), 4), vKA, t * KVS))
    A.i("ds_read_b64 %s, v%d offset:%d" % (vr(KTR + 2 * (k % 3), 2), vKT, t * KVS))


def v_read(t, buf):
    for k in range(4):
        A.i("ds_read_b64_tr_b16 %s, v%d offset:%d" % (vr(VVR + 8 * buf + 2 * k, 2), vVA + k, t * KVS))


def qk_main(k, dst):
    A.i("v_mfma_f32_32x32x16_bf16 %s, %s, %s, 0" % (vr(dst, 16), vr(KMR + 4 * (k % 3), 4), vr(QM, 4)))


def qk_tail(k, dst):
    A.i("v_mfma_f32_32x32x8_bf16 %s, %s, %s, %s" % (vr(dst, 16), vr(KTR + 2 * (k % 3), 2), vr(QT, 2), vr(dst, 16)))


SA, SB, SC = A0, A2, A1
JKV = opt('jkv', 18)


def h_loads(base, step0, nsteps):
    L = []
    for s in range(nsteps):
        def f(s=s):
            st = step0 + s
            A.i("s_mov_b32 s%d, %d" % (sT0, (st // 2) * 4096))
            for rho in range(2):
                A.i("buffer_load_dwordx4 %s, v%d, %s, s%d offen offset:%d sc1" % (
                    vr(base + 8 * s + 4 * rho, 4), vHA, srd(SRD_WS), sT0, (st % 2) * 2048 + rho * 256))
        L.append(f)
    return L


def gemm():
    A.wait_vm_lg0(handles["W0"])
    estamp("arr0")
    A.i("s_barrier")
    eflush()
    stamp("b-1")
    for n in range(4):
        frag_read(n)
    row_stats()
    pk_rd, pk_st = pack_fillers()
    nR = 0
    for n in range(200):
        J, p = divmod(n, 8)
        last = J in (9, 19, 24)
        if n == 84:
            drain()
        main_mfma(n)
        if p == 0 or (p == 4 and not last):
            cs_mfma(n)
        if p == 2 and last:
            cs_mfma(n + 2)
            A.i("s_lshl_b32 s%d, s%d, 10" % (sT0, sCH))
            A.i("s_add_u32 s%d, s%d, %d" % (sT0, sT0, SCR))
            A.i("v_add_u32 v%d, s%d, v%d" % (TMP + 5, sT0, vL))
            A.i("v_lshl_add_u32 v%d, s%d, 2, v%d" % (TMP + 4, sRU, TMP + 5))
        if p == 4:
            A.comment("barrier %d" % J)
            if J == 2:
                A.wait_vm(handles["PK"])
            if J == 6:
                A.wait_vm(handles["pkst"])
            if J == 13:
                A.wait_vm(handles["qst"])
            if J == 15:
                poll_check(TMP + 4, TMP + 5)
            if J == 23:
                A.wait_vm(handles["KV"])
            if J < 9:
                A.wait_vm(handles["X%d" % (J + 1)])
            if J < 24:
                A.wait_vm_lg0(handles["W%d" % (J + 1)])
            else:
                A.wait(nl=0)
            A.i("s_barrier")
            if FINE or J in (0, 9, 19, 24):
                stamp("b%d" % J)
            release("W%d" % J)
            if J < 10:
                release("X%d" % J)
            if J == 3:
                release("PK")
            if last:
                A.i("ds_read_b128 %s, v%d" % (vr(CS0, 4), TMP + 5))
        if n + 4 < 200:
            frag_read(n + 4)
            if n + 4 in range(156, 160):
                i = (n + 4) & 3
                if i == 0:
                    A.many(f"""
                    v_lshrrev_b32 v{TMP+2}, 9, v{vL}
                    v_mul_u32_u24 v{TMP+2}, {MOFF - 512}, v{TMP+2}
                    s_lshl_b32 s{sT1}, s{sCH}, 9
                    v_add3_u32 v{TMP+2}, v{TMP+2}, v{vL}, s{sT1}
                    """)
                A.i("s_xor_b32 s%d, s%d, %d" % (sT1, sRU, i))
                A.i("v_lshl_add_u32 v%d, s%d, 10, v%d" % (vWA + i, sT1, TMP + 2))
        if p == 3 and last:
            A.i("v_cndmask_b32 v%d, v%d, v%d, %s" % (CS0, CS0, CS1, sr(sHI, 2)))
            A.i("ds_write_b32 v%d, v%d" % (TMP + 4, CS0))
        if p == 4:
            new = []
            if J < 3:
                new += issue_w(J + 4)
            elif J == 3:
                new += issue_w(7) + issue_w(8)
            elif J + 5 < 25:
                new += issue_w(J + 5)
            else:
                new += issue_r(nR) + issue_r(nR + 1)
                nR += 2
            if J + 4 < 10:
                x = issue_x(J + 4)
                new = [x[0], new[0], x[1]] + new[1:]
            for f in reversed(new):
                fill.appendleft(f)
            if J == 1:
                fill.append(pub_stats)
            if J == 2:
                pk_rd()
                fill.append(pk_st)
            if J == 6:
                fill.append(lambda: publish_wg("s_lshl_b32 s%d, s2, 2\ns_add_u32 s%d, s%d, %d" % (sT4, sT4, sT4, FLP_OFF)))
                fill.append(one(f"""
                s_lshl_b32 s{sT4}, s{sRT}, 8
                s_add_u32 s{sT4}, s{sT4}, {STAT_OFF}
                v_and_b32 v{vSTA}, 0x1f0, v{vL}
                v_lshrrev_b32 v{vSTA}, 1, v{vSTA}
                v_add_u32 v{vSTA}, s{sT4}, v{vSTA}
                buffer_load_dwordx2 {vr(vGR,2)}, v{vSTA}, {srd(SRD_WS)}, 0 offen sc1
                """))
                fill.append(one(f"""
                s_mov_b64 {sr(SRD_PK,2)}, {sr(SRD_WS,2)}
                s_cmp_eq_u32 s{sCG}, 15
                s_cselect_b32 s{SRD_PK+2}, 0, {HO_OFF}
                {udiv(sT0, sCG, 205, 10)}
                s_mul_i32 s{sT1}, s{sT0}, 5
                s_sub_u32 s{sT1}, s{sCG}, s{sT1}
                s_lshl_b32 s{sT1}, s{sT1}, 2
                s_add_u32 s{sT1}, s{sT1}, s{sCH}
                s_lshl_b32 s{sD2}, s{sT1}, 2
                s_mul_i32 s{sT1}, s{sRT}, 3
                s_add_u32 s{sT0}, s{sT0}, s{sT1}
                s_mul_i32 s{sD3}, s{sT0}, 2560
                v_lshrrev_b32 v{vG205}, 9, v{vL}
                v_mul_u32_u24 v{vG205}, 205, v{vG205}
                """))
            if J == 8:
                def stats_use():
                    poll_check(vSTA, vGR, n=2, tokreg=vGR + 1)
                    A.many(f"""
                    v_and_b32 v{vGR+1}, 0xffff0000, v{vGR}
                    v_and_b32 v{vGR}, 0xffff, v{vGR}
                    v_rcp_f32 v{vRS}, v{vGR+1}
                    v_lshl_or_b32 v{vGR}, v{vGR}, 16, v{vGR}
                    s_cmp_lt_u32 s{sCG}, 5
                    s_cselect_b32 s{sT0}, 0x{f2u(QSCALE):08x}, 1.0
                    v_cndmask_b32 v{vNM}, v{vGR}, 0, {sr(sHI,2)}
                    v_cndmask_b32 v{vNM+1}, 0, v{vGR}, {sr(sHI,2)}
                    v_mul_f32 v{vSC}, s{sT0}, v{vRS}
                    """)
                fill.append(stats_use)
            if J == 10:
                fill.extend(qkv_epi(A1, 1))
            if J == 12:
                alloc("KV", [(XB, XB + 12 * KVS)])
                fill.extend(pad_fillers())
                fill.extend(mask_fillers())
            if J == 13:
                fill.append(lambda: publish_wg(f"""
                s_lshl_b32 s{sT4}, s{sRB}, 4
                s_add_u32 s{sT4}, s{sT4}, s{sCG}
                s_lshl_b32 s{sT4}, s{sT4}, 2
                s_add_u32 s{sT4}, s{sT4}, {FLQ_OFF}
                """))

                def ppk():
                    A.many(f"""
                    s_lshl_b32 s{sT4}, s{sW}, 7
                    s_add_u32 s{sT4}, s{sT4}, {FLP_OFF}
                    v_bfe_u32 v{TMP+4}, v{vL}, 4, 5
                    v_lshl_add_u32 v{TMP+4}, v{TMP+4}, 2, s{sT4}
                    """)
                    poll_issue(TMP + 4, TMP + 5)
                fill.append(ppk)
            if J == JKV - 2:
                def pq():
                    A.many(f"""
                    s_lshl_b32 s{sT4}, s{sRB}, 4
                    s_sub_i32 s{sT4}, s{sT4}, 32
                    v_lshrrev_b32 v{TMP+4}, 4, v{vL}
                    v_min_u32 v{TMP+4}, 47, v{TMP+4}
                    v_add_u32 v{TMP+4}, s{sT4}, v{TMP+4}
                    v_max_i32 v{TMP+4}, 0, v{TMP+4}
                    v_lshlrev_b32 v{TMP+4}, 2, v{TMP+4}
                    v_add_u32 v{TMP+4}, {FLQ_OFF}, v{TMP+4}
                    """)
                    poll_issue(TMP + 4, TMP + 5)
                fill.append(pq)
            if J == JKV - 1:
                fill.append(lambda: None)
                fill.append(lambda: None)
                fill.append(lambda: poll_check(TMP + 4, TMP + 5))
                fill.extend(kv_fillers())
            if J == 21:
                fill.extend(att_prep_fillers())
            if J == 23:
                def pubA():
                    A.wait_vm(handles["hA"])
                    publish_wave(0, 121)
                fill.append(pubA)
                fill.append(lambda: (k_read(0), k_read(1)))
                fill.append(lambda: k_read(2))
                fill.append(lambda: qk_main(0, SA))
                fill.append(lambda: qk_main(1, SB))
                fill.append(lambda: poll_issue(vPA, vPD))
                fill.append(lambda: v_read(0, 0))
                fill.append(lambda: v_read(8, 1))
            if J == 24:
                t = "v_max3_f32 v%d, v%d, v%d, v%d\nv_max3_f32 v%d, v%d, v%d, v%d\n" % (vM, SA, SA + 1, SA + 2, vM + 1, SA + 3, SA + 4, SA + 5)
                for r in range(6, 16, 2):
                    t += "v_max3_f32 v%d, v%d, v%d, v%d\n" % (vM + (r // 2) % 2, SA + r, SA + r + 1, vM + (r // 2) % 2)
                t += f"""
                v_max_f32 v{vM}, v{vM}, v{vM+1}
                v_mov_b32 v{vM+1}, v{vM}
                """
                fill.extend(chunks(t, 5))
        if p == 5 and last:
            A.many(f"""
            v_add_f32 v{CS0}, v{CS0}, v{CS0+1}
            v_add_f32 v{CS0+2}, v{CS0+2}, v{CS0+3}
            v_mov_b32 v{CS1+1}, 0
            v_add_f32 v{CS0}, v{CS0}, v{CS0+2}
            v_mov_b32 v{CS1+2}, 0
            v_cvt_pk_bf16_f32 v{CS0+1}, v{CS0}, v{CS0}
            v_and_b32 v{CS0+1}, 0xffff0000, v{CS0+1}
            v_sub_f32 v{CS0}, v{CS0}, v{CS0+1}
            v_cvt_pk_bf16_f32 v{CS1}, v{CS0+1}, v{CS0}
            v_cvt_pk_bf16_f32 v{CS1+3}, v{CS0+1}, v{CS0}
            """)
        if p in (6, 7) and last:
            hi = p - 6
            a = acc_of(J, hi)
            A.i("v_mfma_f32_32x32x8_bf16 %s, %s, %s, %s" % (vr(a, 16), vr(CS1 + 2 * hi, 2), vr(vNM, 2), vr(a, 16)))
        if n == 79:
            drain()
            fill.extend(qkv_epi(A0, 0))
        if n == 159:
            drain()
            A.i("v_mul_f32 v%d, v%d, v%d" % (vSC, vRS, vRS))
            A.many(ho_base(sD2, f"""
            s_lshl_b32 s{sT0}, s{sT0}, 1
            s_add_u32 s{sT0}, s{sT0}, s{sCH}
            s_lshl_b32 s{sT1}, s{sT0}, 11
            s_add_u32 s{sT1}, s{sT1}, {HO_OFF}
            """))
            fill.extend(gu_epi(A2, 0, "hA") + gu_epi(A0, 1024, "hA"))
        if not (last and p in (2, 3, 5)):
            pump(2 if (80 <= n < 84 or J >= 20 or (J in (3,) and p >= 4)) else 1)
    drain()
    return nR


def attention():
    A.comment("attention")
    vST[0] = 123
    stamp("gend")
    A.many(f"""
    v_permlane32_swap_b32 v{vM+1}, v{vM}
    v_max_f32 v{vM}, v{vM}, v{vM+1}
    v_cvt_pk_bf16_f32 v{vM}, 1.0, -v{vM}
    v_cndmask_b32 v{QT}, v{QT}, v{vM}, {sr(sHI,2)}
    """)
    A.many(ho_base(sD2, f"""
    s_lshl_b32 s{sT0}, s{sT0}, 1
    s_add_u32 s{sT0}, s{sT0}, s{sCH}
    s_lshl_b32 s{sT1}, s{sT0}, 10
    s_add_u32 s{sT1}, s{sT1}, {HO_OFF + 8 * 2048}
    """))
    qk_tail(0, SA)
    qk_tail(1, SB)
    k_read(3)
    k_read(4)
    for f in gu_epi(A1, 0, "hB"):
        f()
    qk_main(2, SC)
    qk_tail(2, SC)
    k_read(5)
    for r in range(16):
        A.i("v_cndmask_b32 v%d, v%d, v%d, %s" % (SA + r, SA + r, SB + r, sr(sMASK + 2 * r, 2)))
    qk_main(3, SB)
    qk_tail(3, SB)
    k_read(6)
    poll_check(vPA, vPD)
    stamp("pollA")
    fill.extend(h_loads(HAR, 0, 8))
    bufs = [SA, SC, SB]
    firstpv = True
    for idx in range(8):
        b = bufs[idx % 3]
        p = PP + 8 * (idx % 2)
        for r in range(16):
            A.i("v_exp_f32 v%d, v%d" % (b + r, b + r))
            if r % 2 == 1 and r >= 3:
                A.i("v_cvt_pk_bf16_f32 v%d, v%d, v%d" % (p + (r - 3) // 2, b + r - 3, b + r - 2))
            if r in (4, 10):
                pump()
        A.i("v_cvt_pk_bf16_f32 v%d, v%d, v%d" % (p + 7, b + 14, b + 15))
        k = idx + 4
        if k <= 8:
            qk_main(k, b)
            qk_tail(k, b)
            if k + 3 <= 8:
                k_read(k + 3)
        if idx == 0:
            p2 = PP + 8
            for j in range(8):
                A.i("v_bfi_b32 v%d, v%d, 0, v%d" % (p2 + j, PM + j, p + j))
                A.i("v_and_b32 v%d, v%d, v%d" % (p + j, PM + j, p + j))
            lst = [(0, p), (1, p2)]
        else:
            lst = [((idx + 1) % 2, p)]
        for (vb, pp) in lst:
            for s in range(2):
                A.i("v_mfma_f32_32x32x16_bf16 %s, %s, %s, %s" % (vr(OO, 16), vr(VVR + 8 * vb + 4 * s, 4), vr(pp + 4 * s, 4), "0" if firstpv else vr(OO, 16)))
                firstpv = False
        if idx == 0:
            v_read(1, 0)
            v_read(2, 1)
        elif idx + 2 <= 7:
            v_read(idx + 2, (idx + 1) % 2)
        if idx == 3:
            A.wait_vm(handles["hB"])
            publish_wave(1, 121)
        if idx == 5:
            A.i("v_add_u32 v%d, 8192, v%d" % (vPA, vPA))
            poll_issue(vPA, vPD)
        if idx == 6:
            fill.extend(chunks(f"""
            s_lshl_b32 s{sT0}, s{sRU}, 10
            v_add_u32 v{vF}, s{sT0}, v{vL}
            v_add_u32 v{vF+1}, {FB1}, v{vF}
            v_add_u32 v{vF+2}, {FB2}, v{vF}
            v_lshrrev_b32 v5, 4, v{vL}
            v_mul_u32_u24 v6, 205, v5
            v_lshrrev_b32 v6, 11, v6
            v_mul_u32_u24 v7, 10, v6
            v_sub_u32 v5, v5, v7
            v_mul_u32_u24 v7, 1280, v6
            v_lshl_add_u32 v{vDO}, v5, 4, v7
            """, 6))
    drain()
    stamp("att")
    A.many(ho_base(sD2, f"""
    s_lshl_b32 s{sT2}, s{sT0}, 9
    s_lshl_b32 s{sT0}, s{sT0}, 1
    s_add_u32 s{sT0}, s{sT0}, s{sCH}
    s_lshl_b32 s{sT0}, s{sT0}, 10
    s_mov_b32 s{sT1}, {HO_OFF + 12 * 2048}
    """))
    A.many(f"""
    s_add_u32 s{sD3}, s{sD2}, s{sT2}
    s_lshl_b32 s{sT2}, s{sCH}, 3
    s_add_u32 s{sD3}, s{sD3}, s{sT2}
    s_add_u32 s{sD3}, s{sD3}, 8192
    s_add_u32 s{sD2}, s{sD2}, s{sT0}
    s_mov_b32 s{sT0}, 0x{f2u(2.0**-60):08x}
    s_mov_b32 s{sT1}, 0x{f2u(2.0**60):08x}
    v_cmp_nlt_f32 vcc, s{sT0}, v{OO+12}
    v_cmp_ngt_f32 {sr(sT2,2) if sT2 % 2 == 0 else sr(sT3,2)}, s{sT1}, v{OO+12}
    s_or_b64 vcc, vcc, {sr(sT2,2) if sT2 % 2 == 0 else sr(sT3,2)}
    """)
    A.i("s_branch L_slow" if FORCESLOW else "s_cbranch_vccnz L_slow")
    A.label("L_back")
    A.i("v_rcp_f32 v%d, v%d" % (vM, OO + 12))
    for r in range(12):
        A.i("v_mul_f32 v%d, v%d, v%d" % (OO + r, vM, OO + r))
    for r in range(6):
        A.i("v_cvt_pk_bf16_f32 v%d, v%d, v%d" % (PP + r, OO + 2 * r, OO + 2 * r + 1))
    A.i("buffer_store_dwordx4 %s, v%d, %s, s%d offen sc1" % (vr(PP, 4), vL, srd(SRD_WS), sD2))
    A.i("s_mov_b64 exec, 0xffffffff")
    handles["o"] = A.i("buffer_store_dwordx2 %s, v%d, %s, s%d offen sc1" % (vr(PP + 4, 2), vL, srd(SRD_WS), sD3))
    A.i("s_mov_b64 exec, -1")


FB1, FB2 = 57376, 114816


def final(nR):
    A.comment("final")
    NF = 85
    LA = 6

    def hreg(s, rho):
        return (HAR + 8 * s if s < 8 else HBR + 8 * (s - 8) if s < 12 else OR + 8 * (s - 12)) + 4 * rho

    def wread(n):
        R, q = divmod(n, 2)
        a = rcell[R] + 4096 * q
        k, base = (0, 0) if a < FB1 else (1, FB1) if a < FB2 else (2, FB2)
        A.i("ds_read_b128 %s, v%d offset:%d" % (vr(FW + 4 * (n % 8), 4), vF + k, a - base))

    def barrier(g):
        nonlocal nR
        drain()
        A.wait_vm_lg0(handles["R%d" % min(5 * g + 4, 42)])
        A.i("s_barrier")
        if FINE or g in (0, 6):
            stamp("fb%d" % g)
        if g == 0:
            release("KV")
        else:
            for R in range(5 * g - 5, 5 * g):
                release("R%d" % R)
        while nR < 43:
            f = issue_r(nR)
            if f is None:
                break
            fill.extend(f)
            nR += 1

    nread = 0
    barrier(0)
    for n in range(NF):
        s, tile = divmod(n, 5)
        while nread < min(n + LA + 1, NF):
            if nread % 10 == 0 and nread > 0:
                barrier(nread // 10)
            wread(nread)
            nread += 1
        if n == 3:
            poll_check(vPA, vPD)
            stamp("pollB")
            hl = h_loads(HBR, 8, 4)
            for f in reversed(hl):
                fill.appendleft(f)
        if n == 12:
            A.wait_vm(handles["o"])
            publish_wave(2, 121)
        if n == 26:
            A.i("v_add_u32 v%d, 8192, v%d" % (vPA, vPA))
            poll_issue(vPA, vPD)
        if n == opt('no', 36):
            stamp("prepollO")
            poll_check(vPA, vPD)
            stamp("pollO")
            hl = h_loads(OR, 12, 5)
            for f in reversed(hl):
                fill.appendleft(f)
        if n == 50:
            A.many(f"""
            s_lshl_b32 s{sT0}, s{sRG}, 3
            s_add_u32 s{sT0}, s{sT0}, s{sW}
            s_mul_i32 s{sD2}, s{sT0}, {8*1280}
            s_mul_i32 s{sT0}, s{sCG8}, 160
            s_add_u32 s{sD2}, s{sD2}, s{sT0}
            s_add_u32 s{sD3}, s{sD2}, 5120
            s_mov_b64 exec, {sr(sE40,2)}
            buffer_load_dwordx4 {vr(XR,4)}, v{vDO}, {srd(SRD_X)}, s{sD2} offen
            buffer_load_dwordx4 {vr(XR+4,4)}, v{vDO}, {srd(SRD_X)}, s{sD3} offen
            s_mov_b64 exec, -1
            """)
            A.many(f"""
            v_lshrrev_b32 v7, 1, v5
            v_lshl_add_u32 v7, v7, 2, v6
            v_mul_u32_u24 v7, {RBS}, v7
            v_and_b32 v5, 1, v5
            v_lshl_add_u32 v7, v5, 5, v7
            s_bfe_u32 s{sT0}, s{sW}, 0x10001
            s_mul_i32 s{sT0}, s{sT0}, {20*RBS}
            s_lshl_b32 s{sT1}, s{sCH}, 10
            s_add_u32 s{sT0}, s{sT0}, s{sT1}
            s_and_b32 s{sT1}, s{sW}, 1
            s_lshl_b32 s{sT1}, s{sT1}, 7
            s_add_u32 s{sT0}, s{sT0}, s{sT1}
            s_add_u32 s{sT0}, s{sT0}, {RB0}
            v_add_u32 v7, s{sT0}, v7
            """)
        for rho in range(2):
            a = FACC + 4 * (rho * 5 + tile)
            A.i("v_mfma_f32_16x16x32_bf16 %s, %s, %s, %s" % (vr(a, 4), vr(hreg(s, rho), 4), vr(FW + 4 * (n % 8), 4), "0" if s == 0 else vr(a, 4)))
        pump()
    drain()
    stamp("fend")
    alloc("RED", [(RB0, RB0 + 40 * RBS)])
    A.i("s_lshl_b32 s%d, s%d, 8" % (sT0, sW))
    for rho in range(2):
        mb = RB0 if rho == 0 else 61440
        A.i("s_add_u32 m0, s%d, %d" % (sT0, mb))
        for tile in range(5):
            for r in range(4):
                o = RB0 + (rho * 20 + tile * 4 + r) * RBS - mb
                assert 0 <= o < 65536
                A.i("ds_write_addtid_b32 v%d offset:%d" % (FACC + 4 * (rho * 5 + tile) + r, o))
    A.wait(nl=0)
    A.i("s_barrier")
    A.i("s_mov_b64 exec, %s" % sr(sE40, 2))
    for t in range(2):
        for kq in range(4):
            for hh in range(2):
                A.i("ds_read_b128 %s, v7 offset:%d" % (vr(128 + 32 * t + 8 * kq + 4 * hh, 4), kq * 256 + t * 64 + 16 * hh))
    for t in range(2):
        b = 128 + 32 * t
        for r in range(4):
            A.i("v_lshlrev_b32 v%d, 16, v%d" % (96 + 2 * r, XR + 4 * t + r))
            A.i("v_and_b32 v%d, 0xffff0000, v%d" % (97 + 2 * r, XR + 4 * t + r))
        for kq in range(4):
            for r in range(8):
                A.i("v_add_f32 v%d, v%d, v%d" % (96 + r, 96 + r, b + 8 * kq + r))
        for r in range(4):
            A.i("v_cvt_pk_bf16_f32 v%d, v%d, v%d" % (104 + 4 * t + r, 96 + 2 * r, 97 + 2 * r))
        A.i("buffer_store_dwordx4 %s, v%d, %s, s%d offen" % (vr(104 + 4 * t, 4), vDO, srd(SRD_OUT), sD3 if t else sD2))
    if STAMPS:
        A.i("s_mov_b64 exec, -1")
        A.wait(nv=0)
        stamp("end")
        stamp("clk1", clk=True)


def slow_path():
    B = Asm()
    S, NEG, OFF, AD = SA, 121, 122, SB
    sMODE, sTT, sT00 = sT0, sT1, sT2
    B.label("L_slow")
    B.many(f"""
    s_nop 15
    v_mov_b32 v{NEG}, 0x3f80
    v_cndmask_b32 v{QT}, v{QT}, v{NEG}, {sr(sHI,2)}
    v_mov_b32 v{NEG}, 0xff800000
    v_mov_b32 v{vM}, v{NEG}
    s_sub_i32 s{sT00}, 8, s{sRT}
    s_max_i32 s{sT00}, s{sT00}, 0
    s_mov_b32 s{sMODE}, 0
    """)
    for r in range(16):
        B.i("v_mov_b32 v%d, 0" % (OO + r))
    B.label("L_s_pass")
    B.i("s_mov_b32 s%d, s%d" % (sTT, sT00))
    B.label("L_s_tile")
    B.i("s_mul_i32 s%d, s%d, %d" % (sT3, sTT, KVS))
    B.i("s_nop 15")
    for k, a in enumerate([vKA, vKT, vVA, vVA + 1, vVA + 2, vVA + 3]):
        B.i("v_add_u32 v%d, s%d, v%d" % (AD + k, sT3, a))
    B.i("ds_read_b128 %s, v%d" % (vr(KMR, 4), AD))
    B.i("ds_read_b64 %s, v%d" % (vr(KTR, 2), AD + 1))
    for k in range(4):
        B.i("ds_read_b64_tr_b16 %s, v%d" % (vr(VVR + 2 * k, 2), AD + 2 + k))
    B.wait(nl=0)
    B.i("v_mfma_f32_32x32x16_bf16 %s, %s, %s, 0" % (vr(S, 16), vr(KMR, 4), vr(QM, 4)))
    B.i("v_mfma_f32_32x32x8_bf16 %s, %s, %s, %s" % (vr(S, 16), vr(KTR, 2), vr(QT, 2), vr(S, 16)))
    B.i("s_nop 15")
    B.i("s_cmp_lg_u32 s%d, 0" % sTT)
    B.i("s_cbranch_scc1 L_s_n0")
    for r in range(16):
        B.i("v_cndmask_b32 v%d, v%d, v%d, %s" % (S + r, NEG, S + r, sr(sMASK + 2 * r, 2)))
    B.label("L_s_n0")
    B.i("s_cmp_lg_u32 s%d, 8" % sTT)
    B.i("s_cbranch_scc1 L_s_n8")
    for r in range(16):
        B.i("v_cndmask_b32 v%d, v%d, v%d, %s" % (S + r, S + r, NEG, sr(sMASK + 2 * r, 2)))
    B.label("L_s_n8")
    B.i("s_cmp_lg_u32 s%d, 0" % sMODE)
    B.i("s_cbranch_scc1 L_s_exp")
    for r in range(0, 16, 2):
        B.i("v_max3_f32 v%d, v%d, v%d, v%d" % (vM, S + r, S + r + 1, vM))
    B.i("s_branch L_s_next")
    B.label("L_s_exp")
    for r in range(16):
        B.i("v_sub_f32 v%d, v%d, v%d" % (S + r, S + r, vM))
    for r in range(16):
        B.i("v_exp_f32 v%d, v%d" % (S + r, S + r))
    for r in range(8):
        B.i("v_cvt_pk_bf16_f32 v%d, v%d, v%d" % (PP + r, S + 2 * r, S + 2 * r + 1))
    for s in range(2):
        B.i("v_mfma_f32_32x32x16_bf16 %s, %s, %s, %s" % (vr(OO, 16), vr(VVR + 4 * s, 4), vr(PP + 4 * s, 4), vr(OO, 16)))
    B.label("L_s_next")
    B.many(f"""
    s_add_u32 s{sTT}, s{sTT}, 1
    s_cmp_le_u32 s{sTT}, 8
    s_cbranch_scc1 L_s_tile
    s_nop 15
    s_cmp_lg_u32 s{sMODE}, 0
    s_cbranch_scc1 L_back
    v_mov_b32 v{vM+1}, v{vM}
    s_nop 1
    v_permlane32_swap_b32 v{vM+1}, v{vM}
    v_max_f32 v{vM}, v{vM}, v{vM+1}
    s_mov_b32 s{sMODE}, 1
    s_branch L_s_pass
    """)
    return B.text()


prologue()
nR = gemm()
attention()
final(nR)
body = A.text()

hdr = open('cdna_kernels/%s.s.ref' % NAME).read().split('; Override launch')[0]
out = hdr + f"""; @launch grid=(256,1,1) block=(512,1,1) lds={LDS_BYTES}
.amdgcn_target "amdgcn-amd-amdhsa--gfx950"
.text
.globl {NAME}_kernel
.p2align 8
.type {NAME}_kernel,@function
.set CODE_SPAN, L_end - {NAME}_kernel - 128
{NAME}_kernel:
{body}L_end:
    s_endpgm
{slow_path()}    s_endpgm
.section .rodata,"a"
.p2align 6
.amdhsa_kernel {NAME}_kernel
  .amdhsa_next_free_vgpr 256
  .amdhsa_next_free_sgpr 102
  .amdhsa_accum_offset 256
  .amdhsa_group_segment_fixed_size 0
  .amdhsa_kernarg_size 80
  .amdhsa_user_sgpr_count 2
  .amdhsa_user_sgpr_kernarg_segment_ptr 1
  .amdhsa_system_sgpr_workgroup_id_x 1
.end_amdhsa_kernel
"""
open(sys.argv[1], 'w').write(out)
print("instructions:", sum(1 for x in A.ins if x.kind != 'label'), "nops:", sum(x.states for x in A.ins if x.kind == 'nop'))
import json
json.dump(dict(HPS=HPS, HO_OFF=HO_OFF, HO_RT=HO_RT, WP_OFF=WP_OFF, WPS=WPS, GB_OFF=GB_OFF, GBS=GBS, STAMP_OFF=STAMP_OFF,
               stamps=stamp_names), open(sys.argv[1] + '.json', 'w'))
```

```python
import re

_reg_re = re.compile(r'^(-|abs\()?([vs])(\d+)\)?$')
_rng_re = re.compile(r'^(-)?([vs])\[(\d+):(\d+)\]$')


def parse_op(tok):
    tok = tok.strip()
    m = _reg_re.match(tok)
    if m:
        return [(m.group(2), int(m.group(3)))]
    m = _rng_re.match(tok)
    if m:
        return [(m.group(2), i) for i in range(int(m.group(3)), int(m.group(4)) + 1)]
    if tok in ('vcc', 'vcc_lo', 'vcc_hi'):
        return [('vcc', 0)]
    if tok in ('exec', 'exec_lo', 'exec_hi'):
        return [('exec', 0)]
    if tok == 'm0':
        return [('m0', 0)]
    return []


TRANS = ('v_exp_', 'v_log_', 'v_rcp_', 'v_rsq_', 'v_sqrt_', 'v_sin_', 'v_cos_')


class Ins:
    __slots__ = ('text', 'mn', 'kind', 'defs', 'uses', 'srcc', 'srcab', 'passes', 'region', 'states', 'data', 'dpp')

    def __init__(self, text):
        self.text = text
        t = text.split(';')[0].strip()
        parts = t.split(None, 1)
        mn = parts[0]
        self.mn = mn
        rest = parts[1] if len(parts) > 1 else ''
        toks = [x.strip() for x in rest.split(',')] if rest else []
        mods = []
        if toks:
            lp = toks[-1].split()
            toks[-1] = lp[0] if lp else ''
            mods = lp[1:]
        ops = [parse_op(x) for x in toks]
        self.defs, self.uses, self.srcc, self.srcab, self.data = [], [], [], [], []
        self.passes = 0
        self.dpp = any(m.startswith(('row_', 'quad_perm', 'wave_')) for m in mods)
        self.states = 1
        flat = lambda l: [r for o in l for r in o]
        if mn.endswith(':'):
            self.kind = 'label'; self.states = 0
        elif mn.startswith('v_mfma'):
            self.kind = 'mfma'
            self.passes = 8 if '32x32' in mn else 4
            self.defs = ops[0]; self.srcab = ops[1] + ops[2]; self.srcc = ops[3]
            self.uses = self.srcab + self.srcc
        elif mn.startswith('v_permlane'):
            self.kind = 'permlane'; self.defs = flat(ops); self.uses = flat(ops)
        elif mn.startswith('v_readfirstlane') or mn.startswith('v_readlane'):
            self.kind = 'readlane'; self.defs = ops[0]; self.uses = flat(ops[1:])
        elif mn.startswith('v_dot2'):
            self.kind = 'dot'; self.defs = ops[0]; self.uses = flat(ops[1:]) + (ops[0] if 'dot2c' in mn else [])
            self.srcab = flat(ops[1:3])
        elif mn.startswith('v_'):
            self.kind = 'trans' if mn.startswith(TRANS) else 'valu'
            self.defs = ops[0]; self.uses = flat(ops[1:])
            if mn.startswith('v_fmac') or mn.startswith('v_writelane'):
                self.uses = self.uses + ops[0]
            if '_co_' in mn:
                self.defs = ops[0] + ops[1]; self.uses = flat(ops[2:])
        elif mn.startswith('ds_read') or mn.startswith('ds_bpermute') or mn.startswith('ds_swizzle'):
            self.kind = 'dsr'; self.defs = ops[0]; self.uses = flat(ops[1:])
        elif mn.startswith('ds_'):
            self.kind = 'dsw'; self.uses = flat(ops) + ([('m0', 0)] if 'addtid' in mn else [])
        elif mn.startswith('buffer_load') or mn.startswith('global_load'):
            if 'lds' in mods:
                self.kind = 'dma'; self.uses = flat(ops) + [('m0', 0)]
            else:
                self.kind = 'vload'; self.defs = ops[0]; self.uses = flat(ops[1:])
        elif mn.startswith('buffer_store') or mn.startswith('buffer_atomic'):
            self.kind = 'vstore'; self.uses = flat(ops); self.data = ops[0]
        elif mn.startswith('global_store'):
            self.kind = 'vstore'; self.uses = flat(ops); self.data = ops[1]
        elif mn.startswith('s_load') or mn.startswith('s_memtime') or mn.startswith('s_memrealtime'):
            self.kind = 'smem'; self.defs = ops[0]; self.uses = flat(ops[1:])
        elif mn == 's_nop':
            self.kind = 'nop'; self.states = int(toks[0], 0) + 1
        elif mn in ('s_waitcnt', 's_barrier', 's_setprio', 's_sleep', 's_endpgm'):
            self.kind = 'misc'
        elif mn.startswith('s_cbranch') or mn == 's_branch':
            self.kind = 'branch'
        elif mn.startswith('s_cmp') or mn.startswith('s_bitcmp'):
            self.kind = 'salu'; self.uses = flat(ops)
        elif mn.startswith('s_'):
            self.kind = 'salu'; self.defs = ops[0]; self.uses = flat(ops[1:])
            if 'saveexec' in mn:
                self.defs = self.defs + [('exec', 0)]
        else:
            raise ValueError('unknown instr ' + text)
        self.defs = set(self.defs); self.uses = set(self.uses)
        self.srcc = set(self.srcc); self.srcab = set(self.srcab); self.data = set(self.data)


VALUK = ('valu', 'trans', 'permlane', 'readlane', 'dot')
VMEMK = ('vload', 'vstore', 'dma')


def need_states(p, c):
    n = 0
    pv = {r for r in p.defs if r[0] == 'v'}
    ps = {r for r in p.defs if r[0] in ('s', 'vcc')}
    if p.kind in VALUK:
        if c.kind == 'mfma' and pv & c.uses:
            n = max(n, 3 if p.kind == 'dot' else 2)
        if c.dpp and pv & c.uses:
            n = max(n, 2)
        if c.kind == 'permlane' and pv & c.uses:
            n = max(n, 2)
        if c.kind == 'readlane' and pv & c.uses:
            n = max(n, 1)
        if p.kind == 'trans' and c.kind in VALUK + ('mfma',) and c.kind != 'trans' and pv & c.uses:
            n = max(n, 1)
        if p.kind == 'trans' and c.kind in VMEMK + ('dsw', 'dsr') and pv & c.uses:
            n = max(n, 1)
        if ps & c.uses:
            if c.kind in VMEMK:
                n = max(n, 5)
            elif c.kind == 'readlane':
                n = max(n, 4)
            elif c.kind in VALUK or c.kind == 'mfma':
                n = max(n, 2)
        if p.kind == 'dot' and pv & (c.uses | c.defs):
            if c.kind == 'dot' and c.mn == p.mn and not (pv & c.srcab):
                pass
            else:
                n = max(n, 3)
    if p.kind == 'mfma':
        big = 12 if p.passes == 8 else 8
        if c.kind == 'mfma':
            if pv & c.srcab:
                n = max(n, big)
            if pv & c.srcc:
                if not (c.srcc == pv and c.passes == p.passes):
                    n = max(n, 10 if p.passes == 8 else 6)
            if pv & c.defs and not (c.srcc == pv and c.passes == p.passes):
                n = max(n, 10 if p.passes == 8 else 6)
        else:
            if pv & (c.uses | c.defs):
                n = max(n, big)
            if c.kind in VALUK + ('vload', 'dsr') and p.srcc & c.defs:
                n = max(n, 7 if p.passes == 8 else 3)
    if p.kind == 'vstore' and len(p.data) >= 3 and p.data & c.defs:
        n = max(n, 2)
    if p.kind == 'salu' and ('m0', 0) in p.defs and ('m0', 0) in c.uses and c.kind in ('dma', 'dsw'):
        n = max(n, 1)
    return n


class Q:
    def __init__(self):
        self.e = []

    def copy(self):
        q = Q(); q.e = [list(x) for x in self.e]; return q


class Asm:
    def __init__(self):
        self.ins = []
        self.vm = Q(); self.lg = Q()
        self.nid = 0
        self.region = 0
        self.nregion = 0
        self.stack = []
        self.nlabel = 0
        self.smem_pending = set()
        self.ghost = 0

    def _emit(self, ins):
        ins.region = self.region
        need = 0
        dist = 0
        cur_r = None
        dist_r = 0
        for p in reversed(self.ins):
            if dist >= 20:
                break
            other = not (p.region == 0 or p.region == ins.region)
            if other:
                if p.region != cur_r:
                    cur_r = p.region; dist_r = 0
                d = dist + dist_r
            else:
                d = dist
            if d < 20 and p.kind != 'label':
                n = need_states(p, ins)
                if n > d:
                    need = max(need, n - d)
            if other:
                dist_r += p.states
            else:
                dist += p.states
        while need > 0:
            k = min(need, 16)
            nop = Ins('s_nop %d' % (k - 1)); nop.region = self.region
            self.ins.append(nop)
            need -= k
        self.ins.append(ins)

    def _wait_for(self, q, idx):
        n = sum(1 for x in q.e[idx + 1:] if x[2])
        return n

    def _autowait(self, ins):
        touched = ins.uses | ins.defs
        nv = nl = None
        for q, name in ((self.vm, 'v'), (self.lg, 'l')):
            last = -1
            for i, x in enumerate(q.e):
                if x[1] & touched:
                    last = i
            if last >= 0:
                n = self._wait_for(q, last)
                if name == 'v':
                    nv = n
                else:
                    nl = n
        if self.smem_pending & touched:
            nl = 0
        if nl is not None and self.smem_pending:
            nl = 0
        self.wait(nv, nl)

    def wait(self, nv=None, nl=None):
        parts = []
        if nv is not None:
            nv = min(nv, 63)
            parts.append('vmcnt(%d)' % nv)
            self._pop(self.vm, nv)
        if nl is not None:
            nl = min(nl, 15)
            parts.append('lgkmcnt(%d)' % nl)
            self._pop(self.lg, nl)
            if nl == 0:
                self.smem_pending = set()
        if parts:
            self._emit(Ins('s_waitcnt ' + ' '.join(parts)))

    def _pop(self, q, n):
        keep = []
        cnt = 0
        for x in reversed(q.e):
            if cnt >= n:
                break
            keep.append(x)
            if x[2]:
                cnt += 1
        q.e = list(reversed(keep))

    def i(self, text):
        ins = Ins(text)
        self._autowait(ins)
        self._emit(ins)
        h = None
        if ins.kind in VMEMK:
            self.nid += 1; h = self.nid
            self.vm.e.append([h, set(ins.defs), True])
        elif ins.kind in ('dsr', 'dsw'):
            self.nid += 1; h = self.nid
            self.lg.e.append([h, set(ins.defs), True])
        elif ins.kind == 'smem':
            self.smem_pending |= ins.defs
        return h

    def many(self, text):
        for l in text.strip().split('\n'):
            l = l.strip()
            if l and not l.startswith(';'):
                self.i(l)

    def wait_vm(self, h):
        for i, x in enumerate(self.vm.e):
            if x[0] == h:
                self.wait(nv=self._wait_for(self.vm, i))
                return

    def wait_vm_lg0(self, h):
        nv = None
        for i, x in enumerate(self.vm.e):
            if x[0] == h:
                nv = self._wait_for(self.vm, i)
        nl = 0 if (self.lg.e or self.smem_pending) else None
        self.wait(nv, nl)

    def wait_lg(self, h):
        for i, x in enumerate(self.lg.e):
            if x[0] == h:
                self.wait(nl=0 if self.smem_pending else self._wait_for(self.lg, i))
                return

    def fork(self, base):
        assert self.region == 0
        B = Asm()
        B.ins = list(self.ins[-40:])
        B.ghost = len(B.ins)
        B.vm, B.lg = self.vm.copy(), self.lg.copy()
        B.nid, B.nregion, B.nlabel = self.nid, self.nregion, base
        B.smem_pending = set(self.smem_pending)
        return B

    def drop(self, hs):
        self.vm.e = [x for x in self.vm.e if x[0] not in hs]
        self.lg.e = [x for x in self.lg.e if x[0] not in hs]

    def certain(self, hs):
        for x in self.vm.e + self.lg.e:
            if x[0] in hs:
                x[2] = True

    def label(self, name):
        l = Ins(name + ':'); l.region = self.region
        self.ins.append(l)

    def newlabel(self, base='L'):
        self.nlabel += 1
        return '%s_%d' % (base, self.nlabel)

    def begin_cond(self):
        assert self.region == 0
        self.nregion += 1
        self.region = self.nregion
        self.stack.append((self.vm.copy(), self.lg.copy(), self.nid))

    def end_cond(self):
        vm0, lg0, nid0 = self.stack.pop()
        for q0, q in ((vm0, self.vm), (lg0, self.lg)):
            new = [[x[0], x[1], False] for x in q.e if x[0] > nid0]
            q.e = q0.e + new
        self.region = 0

    def comment(self, t):
        l = Ins('x:'); l.text = '; ' + t; l.region = self.region
        self.ins.append(l)

    def text(self):
        out = []
        for x in self.ins[self.ghost:]:
            if x.kind == 'label':
                out.append(x.text)
            else:
                out.append('    ' + x.text)
        return '\n'.join(out) + '\n'
```

```python
import sys, math, struct, json
from collections import deque
from asmlib import Asm

NAME = "parallel_sum__sliding_block__glu_gated_reglu__prompt"
ARG = sys.argv[2:]
STAMPS = '--stamps' in ARG
FINE = '--fine' in ARG
EARLY = '--early' in ARG
FORCESLOW = '--slow' in ARG
AB = {a[2:] for a in ARG if a.startswith('--no')}


def opt(name, dflt):
    for a in ARG:
        if a.startswith('--%s=' % name):
            v = a.split('=')[1]
            return int(v) if isinstance(dflt, int) else v
    return dflt


STF = ' ' + opt('stf', 'sc1') if opt('stf', 'sc1') != '-' else ''
STL = ' ' + opt('stl', 'sc1') if opt('stl', 'sc1') != '-' else ''
f2u = lambda f: struct.unpack('<I', struct.pack('<f', f))[0]

SCR = 0
P0 = 2048
SLOT = 16512
MOFF = 8224
slot = lambda c: P0 + SLOT * c
XB = slot(5)
NXS = 3
KVS = 5152
KVB = 0
PKB = slot(9)
LDS_BYTES = 163840
RWS = 20480
HPS = 64 * 7680 + 128
HO_OFF = 16 * HPS
HO_KQ = 17 * 4096
HO_RG = 4 * HO_KQ + 256
WP_OFF = HO_OFF + 32 * HO_RG
WP_KQ = 17 * 5120
WPS = 4 * WP_KQ + 128
STAT_OFF = WP_OFF + 8 * WPS + 8192 + 1024
STAMP_OFF = STAT_OFF + 2048 * 8
WS_BYTES = STAMP_OFF + 2 * 2048 * 256
QSCALE = (20 ** -0.5) * math.log2(math.e)

sI0, sI1 = 0, 1
sW = 3
SRD_X, SRD_Q, SRD_G, SRD_U, SRD_WS, SRD_OUT, SRD_PK, SRD_DBG = 4, 8, 12, 16, 20, 24, 28, 32
sRU, sCH, sRB, sCG, sKX, sKQ, sKG, sKB, sW1K, sTOK, sRT = range(36, 47)
sT0, sT1, sT2, sT3, sT4, sT5 = range(47, 53)
sRG, sCG8, sHBASE = 53, 54, 55
sMASK = 56
sPD0, sPD1 = 88, 89
sHI = 90
sQA, sQB = 92, 93
sSTAMP, sROW = 94, 95
sD0, sD1, sD2, sD3 = 96, 97, 98, 99
srd = lambda b: "s[%d:%d]" % (b, b + 3)
vr = lambda b, n: "v[%d:%d]" % (b, b + n - 1)
sr = lambda b, n: "s[%d:%d]" % (b, b + n - 1)

vL = 0
vWA = 1
vDG = 5
vNM = 6
SEL, CS0, CS1, RING = 8, 12, 16, 20
vRS, vSC, vF0, vF1 = 40, 41, 42, 43
TMP = 44
A0, A1, A2 = 48, 64, 80
XF = 96
vXA, vDX, vDX2, vDQ, vTOKV = 80, 84, 85, 86, 87
vGR = 88
vSTA, vPKD = 90, 91
vPKR = 92
E = 224


class Cur:
    def __init__(self):
        object.__setattr__(self, 'a', Asm())

    def __getattr__(self, n):
        return getattr(self.a, n)

    def use(self, a):
        object.__setattr__(self, 'a', a)


A = Cur()
fill = deque()
dmaq = deque()
live = {}
handles = {}


def alloc(name, ranges):
    for (a0, a1) in ranges:
        assert a1 <= LDS_BYTES
        for n, rs in live.items():
            for (b0, b1) in rs:
                assert a1 <= b0 or b1 <= a0, "LDS overlap %s vs %s" % (name, n)
    live[name] = ranges


def release(name):
    del live[name]


def is_free(a0, a1):
    return all(a1 <= b0 or b1 <= a0 for rs in live.values() for (b0, b1) in rs)


def pump(n=1, q=None):
    q = fill if q is None else q
    for _ in range(n):
        if q:
            q.popleft()()


def drain(q=None):
    q = fill if q is None else q
    while q:
        q.popleft()()


def chunks(text, n):
    ls = [l.strip() for l in text.strip().split('\n') if l.strip() and not l.strip().startswith(';')]
    out = []
    for k in range(0, len(ls), n):
        def f(part=ls[k:k + n]):
            for l in part:
                A.i(l)
        out.append(f)
    return out


def one(text):
    return lambda: A.many(text)


nstamp = [0]
vST = [vF1]
stamps = []
role = ['*']
early = []
ESR = [80, 81, 82, 83, 84, 85, 86, 87]


kern = [0]


def stamp(name="", clk=False):
    if not STAMPS:
        return
    k = nstamp[0]
    nstamp[0] += 1
    assert k < 64
    stamps.append((name, k, role[0], kern[0]))
    A.i("s_memtime s[100:101]" if clk else "s_memrealtime s[100:101]")
    A.wait(nl=0)
    A.i("v_writelane_b32 v%d, s100, %d" % (vST[0], k))


def set_st(r):
    if STAMPS:
        A.i("v_mov_b32 v%d, v%d" % (r, vST[0]))
    vST[0] = r


def estamp(name, force=False, clk=False):
    if not (STAMPS and (EARLY or force)):
        return
    A.i("s_memtime s[100:101]" if clk else "s_memrealtime s[100:101]")
    A.wait(nl=0)
    A.i("s_mov_b32 s%d, s100" % ESR[len(early)])
    early.append(name)


def eflush():
    if not STAMPS:
        return
    idx = [early.index(n) for n in ("start", "clk0", "clk0r")]
    idx += [i for i in range(len(early)) if i not in idx]
    for i in idx:
        k = nstamp[0]
        nstamp[0] += 1
        stamps.append((early[i], k, '*', kern[0]))
        A.i("v_writelane_b32 v%d, s%d, %d" % (vST[0], ESR[i], k))


def dma(vaddr, sd, soff, m0base, m0add, off=0, sc1=False, mid=None):
    A.i("s_add_u32 m0, s%d, %d" % (m0base, m0add - off))
    if mid:
        A.many(mid)
    return A.i("buffer_load_dwordx4 v%d, %s, s%d offen%s%s lds" % (
        vaddr, srd(sd), soff, " offset:%d" % off if off else "", " sc1" if sc1 else ""))


def adv0(s, step, wrap):
    return "s_add_u32 s%d, s%d, %d\ns_cmp_eq_u32 s%d, %d\ns_cselect_b32 s%d, 0, s%d" % (s, s, step, s, wrap, s, s)


waddr = {}
QR = opt('qr', 5)


def issue_w(j):
    cand = [slot(c) for c in ((8, 4, 5, 6, 7, 0, 1, 2, 3) if j >= 10 else range(QR))]
    if j >= 10 and 9 not in waddr:
        cand = [slot(c) for c in range(8, QR - 1, -1) if c not in (5, 6, 7) or "X9" in handles]
    o = next((c for c in cand if is_free(c, c + SLOT)), None)
    if o is None:
        return None
    waddr[j] = o
    alloc("W%d" % j, [(o, o + SLOT)])
    first = j in (0, 10)

    def f0():
        if j < 10:
            dma(vDQ, SRD_Q, sKQ, sW1K, o, mid=None if first else adv0(sKQ, 245760, 2457600))
        else:
            if j == 20:
                A.many(f"""
                v_bfe_u32 v{vF0}, v{vDG}, 5, 1
                s_bitcmp1_b32 s{sCG}, 0
                v_mul_u32_u24 v{vF0}, {196608 - 32}, v{vF0}
                s_cselect_b32 s{sI0}, 0, 0xc0
                v_add3_u32 v{vF0}, v{vF0}, v{vDG}, s{sI0}
                v_bfe_u32 v{vDG}, v{vDG}, 6, 1
                v_lshl_add_u32 v{vDG}, v{vDG}, 5, 64
                v_sub_u32 v{vDG}, v{vF0}, v{vDG}
                """)
            dma(vDG, SRD_G, sKG, sW1K, o, mid=None if first else adv0(sKG, 196608 * (2 if j > 20 else 1), 1966080))

    def f1():
        if j < 10:
            h = dma(vDQ, SRD_Q, sKQ, sW1K, MOFF + o, off=128)
        else:
            h = dma(vDG, SRD_U, sKG, sW1K, MOFF + o)
        handles["W%d" % j] = h
    return [f0, f1]


def issue_x(j):
    o = slot(5 + j % NXS)
    alloc("X%d" % j, [(o, o + SLOT)])

    def f0():
        dma(vDX, SRD_X, sKX, sW1K, o, mid=None if j == 0 else adv0(sKX, 128, 1280))

    def f1():
        handles["X%d" % j] = dma(vDX2, SRD_X, sKX, sW1K, o + 8192)
    return [f0, f1]


def mk_srd(b, ptr, nbytes):
    return "s_mov_b64 %s, %s\ns_mov_b32 s%d, %d\ns_mov_b32 s%d, 0x00020000\n" % (sr(b, 2), sr(ptr, 2), b + 2, nbytes, b + 3)


OOL = []


def poll_check(vaddr, vdst, n=1, tokreg=None):
    tok = vdst if tokreg is None else tokreg
    Ld, Ll = A.newlabel("Lpd"), A.newlabel("Lpl")
    A.i("v_cmp_ne_u32 vcc, s%d, v%d" % (sTOK, tok))
    A.i("s_cbranch_vccnz %s_e" % Ll)
    A.label(Ld)
    B = Asm()
    B.label(Ll + "_e")
    B.i("s_mov_b32 s%d, 0" % sI1)
    B.label(Ll)
    B.i("s_sleep 1")
    if n == 1:
        B.i("buffer_load_dword v%d, v%d, %s, 0 offen sc1" % (vdst, vaddr, srd(SRD_WS)))
    else:
        B.i("buffer_load_dwordx2 %s, v%d, %s, 0 offen sc1" % (vr(vdst, 2), vaddr, srd(SRD_WS)))
    B.i("s_add_u32 s%d, s%d, 1" % (sI1, sI1))
    B.wait(nv=0)
    B.i("v_cmp_ne_u32 vcc, s%d, v%d" % (sTOK, tok))
    B.i("s_cmp_gt_u32 s%d, 200000" % sI1)
    B.i("s_cbranch_scc1 %s" % Ld)
    B.i("s_cbranch_vccnz %s" % Ll)
    B.i("s_branch %s" % Ld)
    OOL.append(B.text())


def only_if(sreg, f):
    L = A.newlabel("Lif")
    A.i("s_cmp_eq_u32 s%d, 0" % sreg)
    A.i("s_cbranch_scc1 %s" % L)
    A.begin_cond()
    f()
    A.end_cond()
    A.label(L)


def rnd_bf16(v):
    return "v_cvt_pk_bf16_f32 v%d, v%d, v%d\nv_and_b32 v%d, 0xffff0000, v%d\n" % (v, v, v, v, v)


def udiv(dst, src, mul, sh):
    return "s_mul_i32 s%d, s%d, %d\ns_lshr_b32 s%d, s%d, %d" % (dst, src, mul, dst, dst, sh)

SD = E + 16
vLane = E
ROT = {0: f"""s_add_u32 s{sKB}, s{sCG}, s{sRB}
              s_mul_i32 s{sT4}, s{sKB}, 52
              s_lshr_b32 s{sT4}, s{sT4}, 8
              s_mul_i32 s{sT4}, s{sT4}, 5
              s_sub_u32 s{sKB}, s{sKB}, s{sT4}
              s_lshl_b32 s{sKB}, s{sKB}, 1""",
       1: f"s_mov_b32 s{sKB}, 0",
       }[opt('rot', 0)]
assert all((v * 52) >> 8 == v // 5 for v in range(31))
NPRO = opt('npro', 2)
NPRL = opt('nprl', 0)
PQ = opt('pq', 'X2,W2,W3').split(',')
PBAR = opt('pbar', 0)


def xw(j):
    x0 = issue_x(j)
    w0 = issue_w(j)
    for f in [x0[0], w0[0], x0[1], w0[1]]:
        f()


def queue_pq():
    for it in PQ:
        if it == 'PK':
            dmaq.append(pack_dma())
        elif it[0] == 'X':
            dmaq.extend(issue_x(int(it[1:])))
        else:
            dmaq.extend(issue_w(int(it[1:])))


def prologue():
    l = vLane
    A.many(f"""
    s_getpc_b64 s[78:79]
    s_lshr_b32 s{sT1}, s2, 3
    s_lshl_b32 s{sT2}, s{sT1}, 11
    v_lshrrev_b32 v2, 5, v0
    v_lshl_add_u32 v2, v2, 7, s{sT2}
    v_min_u32 v2, CODE_SPAN, v2
    s_cmp_ge_u32 s2, 256
    s_cbranch_scc1 L_end
    global_load_dword v255, v2, s[78:79]
    s_load_dwordx16 s[56:71], s[0:1], 0
    s_load_dwordx4 s[72:75], s[0:1], 64
    s_memrealtime s[76:77]
    v_lshrrev_b32 v1, 6, v0
    v_and_b32 v{l}, 63, v0
    s_and_b32 s{sT0}, s2, 7
    v_readfirstlane_b32 s{sW}, v1
    s_and_b32 s{sT2}, s{sT1}, 7
    s_lshr_b32 s{sT3}, s{sT1}, 3
    s_and_b32 s{sRB}, s{sT0}, 1
    s_lshl3_add_u32 s{sRB}, s{sRB}, s{sT2}
    s_lshr_b32 s{sCG}, s{sT0}, 1
    s_lshl2_add_u32 s{sCG}, s{sCG}, s{sT3}
    {ROT}
    v_lshrrev_b32 v2, 3, v0
    v_lshrrev_b32 v3, 4, v0
    v_xor_b32 v4, v3, v0
    v_and_b32 v4, 7, v4
    v_lshlrev_b32 v4, 4, v4
    s_mul_i32 s{sT4}, s{sRB}, {128*1280}
    v_mul_u32_u24 v5, 1280, v2
    s_lshl_b32 s{sW1K}, s{sW}, 10
    s_lshl_b32 s{sKX}, s{sKB}, 7
    v_add3_u32 v{vDX}, v4, v5, s{sT4}
    s_mov_b32 s{SRD_X+2}, {2048*1280}
    s_mov_b32 s{SRD_X+3}, 0x00020000
    v_lshlrev_b32 v3, 2, v3
    v_xor_b32 v3, v3, v0
    v_and_b32 v3, 7, v3
    v_lshlrev_b32 v3, 4, v3
    s_lshl_b32 s{sT4}, s{sCG}, 8
    v_mul_u32_u24 v5, 3840, v2
    s_mul_i32 s{sKQ}, s{sKB}, 245760
    v_add3_u32 v{vDQ}, v3, v5, s{sT4}
    v_add_u32 v{vDX2}, {64*1280}, v{vDX}
    s_cmp_eq_u32 s{sCG}, 15
    s_cselect_b32 s{SRD_Q+2}, 0, {640*3840}
    s_mov_b32 s{SRD_Q+3}, 0x00020000
    s_mov_b64 {sr(SRD_X,2)}, s[56:57]
    s_mov_b64 {sr(SRD_Q,2)}, s[58:59]
    """)
    if STAMPS:
        A.i("s_mov_b32 s%d, s76" % ESR[0])
        early.append("start")
    estamp("karg")
    for j in range(NPRO):
        xw(j)
    estamp("iss1")
    A.many(f"""
    s_and_b32 s{sRU}, s{sW}, 3
    s_lshr_b32 s{sCH}, s{sW}, 2
    s_mul_i32 s{sT4}, s{sCG}, 192
    s_and_b32 s{sT5}, s{sCG}, 1
    s_lshl_b32 s{sT5}, s{sT5}, 6
    s_add_u32 s{sT4}, s{sT4}, s{sT5}
    v_mul_u32_u24 v5, 3072, v2
    v_add3_u32 v{vDG}, v3, v5, s{sT4}
    v_lshlrev_b32 v{vL}, 4, v{l}
    s_lshl4_add_u32 s{sT4}, s{sRB}, s{sCG}
    s_lshl3_add_u32 s{sROW}, s{sT4}, s{sW}
    s_mul_i32 s{sT4}, s{sROW}, 1280
    v_mov_b32 v{SD+4}, 0
    v_mov_b32 v{SD+5}, 0
    v_mov_b32 v{SD+6}, 0
    v_mov_b32 v{SD+7}, 0
    buffer_load_dwordx4 {vr(SD,4)}, v{vL}, {srd(SRD_X)}, s{sT4} offen
    s_mov_b64 exec, 0xffff
    buffer_load_dwordx4 {vr(SD+4,4)}, v{vL}, {srd(SRD_X)}, s{sT4} offen offset:1024
    s_mov_b64 exec, -1
    {mk_srd(SRD_DBG, 72, 256)}
    s_or_b32 s{sT4}, s2, s{sW}
    s_cmp_eq_u32 s{sT4}, 0
    s_cselect_b32 s{sT4}, 0, 0x1000
    s_or_b32 s{sT5}, s76, 1
    v_mov_b32 v2, s{sT5}
    buffer_store_dword v2, off, {srd(SRD_DBG)}, s{sT4} offset:128 sc1
    """)
    A.many(f"""
    s_lshl2_add_u32 s{sRT}, s{sRB}, s{sRU}
    s_mul_i32 s{sKG}, s{sKB}, 196608
    """)
    A.many(f"""
    v_lshrrev_b32 v1, 5, v{l}
    v_lshlrev_b32 v1, 10, v1
    v_bfe_u32 v2, v{l}, 2, 2
    v_lshl_add_u32 v1, v2, 7, v1
    v_lshrrev_b32 v2, 1, v2
    v_xor_b32 v2, s{sCH}, v2
    v_lshl_add_u32 v1, v2, 6, v1
    v_and_b32 v3, 3, v{l}
    v_lshl_add_u32 v1, v3, 3, v1
    v_lshl_add_u32 v1, s{sRU}, 11, v1
    v_bfe_u32 v{TMP}, v{l}, 4, 1
    v_mul_u32_u24 v{TMP}, {MOFF}, v{TMP}
    v_add_u32 v{TMP}, {P0}, v{TMP}
    v_xor_b32 v2, 2048, v1
    v_xor_b32 v3, 4096, v1
    v_xor_b32 v4, 6144, v1
    v_add_u32 v1, v1, v{TMP}
    v_add_u32 v2, v2, v{TMP}
    v_add_u32 v3, v3, v{TMP}
    v_add_u32 v4, v4, v{TMP}
    """)
    A.many(f"""
    v_bfe_u32 v{TMP}, v{l}, 1, 3
    v_lshrrev_b32 v{TMP+1}, 5, v{l}
    v_xor_b32 v{TMP}, v{TMP}, v{TMP+1}
    s_lshl_b32 s{sT4}, s{sRU}, 1
    v_xor_b32 v{TMP}, s{sT4}, v{TMP}
    v_lshlrev_b32 v{TMP}, 4, v{TMP}
    v_and_b32 v{TMP+1}, 31, v{l}
    v_lshl_add_u32 v{TMP}, v{TMP+1}, 7, v{TMP}
    s_lshl_b32 s{sT4}, s{sRU}, 12
    s_add_u32 s{sT4}, s{sT4}, {XB}
    v_add_u32 v{vXA}, s{sT4}, v{TMP}
    v_xor_b32 v{vXA+1}, 32, v{vXA}
    v_xor_b32 v{vXA+2}, 64, v{vXA}
    v_xor_b32 v{vXA+3}, 96, v{vXA}
    """)
    assert XB % 128 == 0
    A.many(f"""
    v_lshrrev_b32 v{TMP}, 2, v{l}
    v_and_b32 v{TMP}, 4, v{TMP}
    v_xor_b32 v{TMP}, v{TMP}, v{l}
    v_and_b32 v{TMP}, 7, v{TMP}
    v_cmp_eq_u32 vcc, 0, v{TMP}
    v_mov_b32 v{TMP+1}, 0x3f803f80
    v_cndmask_b32 v{SEL}, 0, v{TMP+1}, vcc
    v_cndmask_b32 v{SEL+1}, 0, v{TMP+1}, vcc
    v_cndmask_b32 v{SEL+2}, 0, v{TMP+1}, vcc
    v_cndmask_b32 v{SEL+3}, 0, v{TMP+1}, vcc
    {mk_srd(SRD_WS, 74, WS_BYTES)}
    {mk_srd(SRD_G, 64, 640 * 3072)}
    {mk_srd(SRD_U, 66, 640 * 3072)}
    s_mov_b32 s{sHI}, 0
    s_mov_b32 s{sHI+1}, -1
    """)
    if STAMPS:
        A.i("s_lshl3_add_u32 s%d, s2, s%d" % (sSTAMP, sW))
        A.i("s_lshl_b32 s%d, s%d, 8" % (sSTAMP, sSTAMP))
        A.i("s_add_u32 s%d, s%d, %d" % (sSTAMP, sSTAMP, STAMP_OFF))
    A.many(f"""
    {udiv(sT0, sCG, 205, 10)}
    s_mul_i32 s{sT1}, s{sT0}, 5
    s_sub_u32 s{sT1}, s{sCG}, s{sT1}
    s_lshl2_add_u32 s{sT1}, s{sT1}, s{sCH}
    s_lshl_b32 s{sQA}, s{sT1}, 2
    s_mul_i32 s{sT1}, s{sRT}, 3
    s_add_u32 s{sT0}, s{sT0}, s{sT1}
    s_mul_i32 s{sQB}, s{sT0}, 2560
    s_lshr_b32 s{sT0}, s{sRT}, 1
    s_mul_i32 s{sHBASE}, s{sT0}, {HO_RG}
    s_lshr_b32 s{sT0}, s{sCG}, 2
    s_mul_i32 s{sT0}, s{sT0}, {HO_KQ}
    s_add_u32 s{sHBASE}, s{sHBASE}, s{sT0}
    s_and_b32 s{sT0}, s{sRU}, 1
    s_lshl_b32 s{sT0}, s{sT0}, 11
    s_add_u32 s{sHBASE}, s{sHBASE}, s{sT0}
    s_add_u32 s{sHBASE}, s{sHBASE}, {HO_OFF}
    s_lshl_b32 s{sT4}, s{sRT}, 8
    s_add_u32 s{sT4}, s{sT4}, {STAT_OFF}
    v_and_b32 v{vSTA}, 0x1f0, v{vL}
    v_lshrrev_b32 v{vSTA}, 1, v{vSTA}
    v_add_u32 v{vSTA}, s{sT4}, v{vSTA}
    """)
    pack_decode()
    queue_pq()
    if PBAR:
        A.i("s_barrier")
    pump(NPRL, dmaq)
    estamp("iss4")


sPKV = sKB


def pack_decode():
    l = vLane
    U, T, L, KQ, ST, AA, ROW, BB, CC, EE = sT0, sT1, sT2, sT3, sT4, sT5, sD0, sD1, sD2, sD3
    nib = 0
    for st, v in enumerate([0, 1, 4, 5, 6, 7, 10, 11, 2, 3, 8, 9]):
        nib |= v << (4 * st)
    A.many(f"""
    s_lshr_b32 s{T}, s{sW}, 1
    s_lshl_b32 s{T}, s{T}, 8
    s_add_u32 s{U}, s2, s{T}
    s_cmp_lt_u32 s{U}, 680
    s_cselect_b32 s{sPKV}, 1, 0
    s_and_b32 s{EE}, s{sW}, 1
    {udiv(T, U, 6554, 16)}
    s_mul_i32 s{L}, s{T}, 10
    s_sub_u32 s{L}, s{U}, s{L}
    {udiv(KQ, T, 241, 12)}
    s_mul_i32 s{ST}, s{KQ}, 17
    s_sub_u32 s{ST}, s{T}, s{ST}
    s_mul_i32 s{ROW}, s{T}, 5
    s_lshl1_add_u32 s{T}, s{L}, s{EE}
    s_lshl_b32 s{T}, s{T}, 1
    {udiv(sPD0, T, 205, 10)}
    s_add_u32 s{AA}, s{T}, 1
    {udiv(sPD1, AA, 205, 10)}
    s_mul_i32 s{sPD0}, s{sPD0}, {WPS - 5120}
    s_mul_i32 s{sPD1}, s{sPD1}, {WPS - 5120}
    s_add_u32 s{T}, s{T}, s{ROW}
    s_lshl_b32 s{T}, s{T}, 10
    s_add_u32 s{T}, s{T}, {WP_OFF}
    s_add_u32 s{sPD0}, s{sPD0}, s{T}
    s_add_u32 s{sPD1}, s{sPD1}, s{T}
    s_add_u32 s{sPD1}, s{sPD1}, 1024
    s_mov_b32 s78, {nib & 0xffffffff}
    s_mov_b32 s79, {nib >> 32}
    s_lshl_b32 s{T}, s{ST}, 2
    s_lshr_b64 s[78:79], s[78:79], s{T}
    s_and_b32 s78, s78, 15
    s_mul_i32 s{ROW}, s{KQ}, 12
    s_add_u32 s{ROW}, s{ROW}, s78
    s_lshl_b32 s{ROW}, s{ROW}, 5
    s_and_b32 s78, s{ST}, 1
    s_mul_i32 s78, s78, 80
    s_bfe_u32 s79, s{ST}, 0x10001
    s_mul_i32 s79, s79, 24
    s_add_u32 s78, s78, s79
    s_mul_i32 s{T}, s{KQ}, 160
    s_cmp_eq_u32 s{ST}, 16
    s_cmov_b32 s78, 16
    s_cselect_b32 s{AA}, 80, 40
    s_cselect_b32 s{BB}, 4, 8
    s_cselect_b32 s{CC}, 40, 4
    s_add_u32 s{T}, s{T}, s78
    s_cmp_ge_u32 s{ST}, 12
    s_cselect_b32 s{ROW}, s{T}, s{ROW}
    s_cselect_b32 s{AA}, s{AA}, 16
    s_cselect_b64 {sr(SRD_PK,2)}, s[60:61], s[68:69]
    s_mov_b32 s{SRD_PK+2}, {1536*1280}
    s_cmov_b32 s{SRD_PK+2}, {640*1280}
    s_mov_b32 s{SRD_PK+3}, 0x00020000
    s_lshl_b32 s{L}, s{L}, 7
    s_mul_i32 s{AA}, s{AA}, s{EE}
    s_add_u32 s{ROW}, s{ROW}, s{AA}
    s_mul_i32 s{ROW}, s{ROW}, 1280
    s_add_u32 s{ROW}, s{ROW}, s{L}
    s_mul_i32 s{BB}, s{BB}, 1280
    s_add_u32 s{BB}, s{BB}, s{ROW}
    s_lshr_b32 s{ST}, s{sW}, 1
    v_lshrrev_b32 v{TMP}, 5, v{l}
    v_bfe_u32 v{TMP+1}, v{l}, 3, 2
    v_mad_u32_u24 v{TMP+1}, v{TMP}, s{CC}, v{TMP+1}
    v_and_b32 v{TMP+2}, 0x70, v{vL}
    v_mul_u32_u24 v{TMP+1}, 1280, v{TMP+1}
    v_add_u32 v{vPKD}, v{TMP+1}, v{TMP+2}
    s_lshl_b32 s{ST}, s{ST}, 6
    s_add_u32 s{ST}, s{ST}, s{EE}
    s_lshl_b32 s{ST}, s{ST}, 6
    s_add_u32 s{ST}, s{ST}, {PKB}
    v_lshlrev_b32 v{vPKR}, 11, v{TMP}
    v_bfe_u32 v{TMP+1}, v{l}, 4, 1
    v_lshl_add_u32 v{vPKR}, v{TMP+1}, 9, v{vPKR}
    v_bfe_u32 v{TMP+1}, v{l}, 2, 2
    v_lshl_add_u32 v{vPKR}, v{TMP+1}, 7, v{vPKR}
    v_and_b32 v{TMP+1}, 3, v{l}
    v_lshl_add_u32 v{vPKR}, v{TMP+1}, 3, v{vPKR}
    v_add_u32 v{vPKR}, s{ST}, v{vPKR}
    """)


def pack_dma():
    alloc("PK", [(PKB, PKB + 12288)])

    def f():
        if 'nopkd' in AB:
            handles["PK"] = handles["W0"]
            return
        for k in range(2):
            A.i("s_lshl1_add_u32 m0, s%d, %d" % (sW1K, PKB + 1024 * k))
            handles["PK"] = A.i("buffer_load_dwordx4 v%d, %s, s%d offen lds" % (vPKD, srd(SRD_PK), sD0 + k))
    return lambda: only_if(sPKV, f)


PKD = (E + 24, E + 28)


def pack_rd():
    def rd():
        for t in range(2):
            for half in range(2):
                A.i("ds_read_b64_tr_b16 %s, v%d offset:%d" % (vr(PKD[t] + 2 * half, 2), vPKR, 32 * t + 1024 * half))
    only_if(sPKV, rd)


def pack_st(t):
    def st():
        if 'nopks' in AB:
            handles["pkst"] = handles["PK"]
            return
        handles["pkst"] = A.i("buffer_store_dwordx4 %s, v%d, %s, s%d offen%s" % (vr(PKD[t], 4), vL, srd(SRD_WS), sPD0 + t, STF))
    return lambda: only_if(sPKV, st)


def row_stats():
    vS, vQ = E + 1, E + 2
    sT0, sT1, sT2, sT3 = 84, 85, 86, 87
    t = "s_mov_b32 s%d, 0x3f803f80\nv_mov_b32 v%d, 0\nv_mov_b32 v%d, 0\n" % (sT0, vS, vQ)
    for r in range(8):
        t += "v_dot2c_f32_bf16 v%d, s%d, v%d\n" % (vS, sT0, SD + r)
        t += "v_dot2c_f32_bf16 v%d, v%d, v%d\n" % (vQ, SD + r, SD + r)
    L = chunks(t, 5)
    t = "v_permlane32_swap_b32 v%d, v%d\n" % (vS, vQ)
    t += "v_add_f32 v%d, v%d, v%d\n" % (vS, vS, vQ)
    for k in (1, 2, 4, 8):
        t += "v_add_f32_dpp v%d, v%d, v%d row_ror:%d row_mask:0xf bank_mask:0xf\n" % (vS, vS, vS, k)
    L += chunks(t, 2)
    t = ""
    for k in range(4):
        t += "v_readlane_b32 s%d, v%d, %d\n" % (sT0 + k, vS, 16 * k)
    t += f"""
    v_mov_b32 v{vS}, s{sT0}
    v_mov_b32 v{vQ}, s{sT2}
    v_add_f32 v{vS}, s{sT1}, v{vS}
    v_add_f32 v{vQ}, s{sT3}, v{vQ}
    v_mul_f32 v{vS}, {1.0/640!r}, v{vS}
    v_mul_f32 v{vQ}, {1.0/640!r}, v{vQ}
    v_fma_f32 v{vQ}, -v{vS}, v{vS}, v{vQ}
    v_max_f32 v{vQ}, 0, v{vQ}
    {rnd_bf16(vQ)}
    v_add_f32 v{vQ}, 0x3727c5ac, v{vQ}
    {rnd_bf16(vQ)}
    v_sqrt_f32 v{vQ}, v{vQ}
    v_sub_f32 v{vS}, 0, v{vS}
    v_cvt_pk_bf16_f32 v{vGR}, v{vS}, v{vQ}
    """
    return L + chunks(t, 5)


def get_token():
    if 'notok' in AB:
        A.i("s_mov_b32 s%d, 0x12345" % sTOK)
        return
    Ld, Ll = A.newlabel("Ltd"), A.newlabel("Ltl")
    A.i("v_readfirstlane_b32 s%d, v%d" % (sTOK, vTOKV))
    A.i("s_cmp_eq_u32 s%d, 0" % sTOK)
    A.i("s_cbranch_scc1 %s_e" % Ll)
    A.label(Ld)
    B = Asm()
    B.label(Ll + "_e")
    B.i("s_mov_b32 s%d, 0" % sI1)
    B.label(Ll)
    B.i("buffer_load_dword v%d, off, %s, 0 offset:128 sc1" % (vTOKV, srd(SRD_DBG)))
    B.i("s_add_u32 s%d, s%d, 1" % (sI1, sI1))
    B.wait(nv=0)
    B.i("v_readfirstlane_b32 s%d, v%d" % (sTOK, vTOKV))
    B.i("s_cmp_gt_u32 s%d, 200000" % sI1)
    B.i("s_cbranch_scc1 %s" % Ld)
    B.i("s_cmp_eq_u32 s%d, 0" % sTOK)
    B.i("s_cbranch_scc1 %s" % Ll)
    B.i("s_branch %s" % Ld)
    OOL.append(B.text())


def pub_stats():
    get_token()
    if 'nostat' in AB:
        return
    A.many(f"""
    v_mov_b32 v{vGR+1}, s{sTOK}
    s_lshl3_add_u32 s84, s{sROW}, {STAT_OFF}
    buffer_store_dwordx2 {vr(vGR,2)}, off, {srd(SRD_WS)}, s84 sc1
    """)


LAST = (9, 19, 24)
ORD_N = [(p >> 2, p & 3) for p in range(8)]
ORD_L = [(0, 0), (1, 0), (0, 1), (0, 2), (0, 3), (1, 1), (1, 2), (1, 3)]
sHA, sHB, sHO, sHT = sPD0, sPD1, sROW, sKX


def hi_i(n):
    J, p = divmod(n, 8)
    return (ORD_L if J in LAST else ORD_N)[p]


def xf(j, i):
    return XF + 16 * j + 4 * i


rreg = {}
rfree = deque(RING + 4 * k for k in range(5))
wbase = {r: P0 for r in range(vWA, vWA + 4)}
WSPAN = 65536 - 600


def w_read(key, J, areg, off):
    d = rfree.popleft()
    rreg[key] = d
    o = waddr[J]
    if not (0 <= o - wbase[areg] <= WSPAN):
        def run(b):
            k = 0
            while J + k in waddr and 0 <= waddr[J + k] - b <= WSPAN:
                k += 1
            return k
        nb = max([waddr[k] for k in waddr if k >= J and 0 <= o - waddr[k] <= WSPAN], key=run)
        A.i("v_add_u32 v%d, %d, v%d" % (areg, nb - wbase[areg], areg))
        wbase[areg] = nb
    for half in range(2):
        A.i("ds_read_b64_tr_b16 %s, v%d offset:%d" % (vr(d + 2 * half, 2), areg, o - wbase[areg] + half * 512 + off))


def frag_read(n):
    J, p = divmod(n, 8)
    hi, i = hi_i(n)
    w_read(n, J, vWA + i, hi * 32)
    if J < 10 and p < 4:
        A.i("ds_read_b128 %s, v%d offset:%d" % (vr(xf(J, p), 4), vXA + p, SLOT * (J % NXS)))


def acc_of(J, hi):
    return (A0, A1)[hi] if J < 10 else (A2, A0)[hi] if J < 20 else A1


def x_of(J, hi, i):
    return xf(J % 10, i) if J < 20 else xf(2 * (J - 20) + hi, i)


def mm(a, w, x, first):
    A.i("v_mfma_f32_32x32x16_bf16 %s, %s, %s, %s" % (vr(a, 16), vr(w, 4), vr(x, 4), "0" if first else vr(a, 16)))


def cs_mm(c, w, first):
    if 'nocs' in AB:
        return
    A.i("v_mfma_f32_16x16x32_bf16 %s, %s, %s, %s" % (vr(c, 4), vr(SEL, 4), vr(w, 4), "0" if first else vr(c, 4)))


def cs_write():
    A.many(f"""
    s_lshl_b32 s{sI0}, s{sCH}, 10
    v_cndmask_b32 v{CS0}, v{CS0}, v{CS1}, {sr(sHI,2)}
    v_add_u32 v{CS1+1}, s{sI0}, v{vL}
    v_lshl_add_u32 v{CS0+1}, s{sRU}, 2, v{CS1+1}
    """)
    handles["csw"] = A.i(f"ds_write_b32 v{CS0+1}, v{CS0} offset:{SCR}")


def cs_read():
    A.i("ds_read_b128 %s, v%d offset:%d" % (vr(CS0, 4), CS1 + 1, SCR))


def cs_split():
    A.many(f"""
    v_add_f32 v{CS0}, v{CS0}, v{CS0+1}
    v_add_f32 v{CS0+2}, v{CS0+2}, v{CS0+3}
    v_mov_b32 v{CS1+1}, 0
    v_add_f32 v{CS0}, v{CS0}, v{CS0+2}
    v_mov_b32 v{CS1+2}, 0
    v_cvt_pk_bf16_f32 v{CS0+1}, v{CS0}, v{CS0}
    v_and_b32 v{CS0+1}, 0xffff0000, v{CS0+1}
    v_sub_f32 v{CS0}, v{CS0}, v{CS0+1}
    v_cvt_pk_bf16_f32 v{CS1}, v{CS0+1}, v{CS0}
    v_cvt_pk_bf16_f32 v{CS1+3}, v{CS0+1}, v{CS0}
    """)


def cs_corr(a, hi):
    A.i("v_mfma_f32_32x32x8_bf16 %s, %s, %s, %s" % (vr(a, 16), vr(CS1 + 2 * hi, 2), vr(vNM, 2), vr(a, 16)))


def qkv_epi(b, b2):
    L = []
    K = HPS - 2560
    for q in range(4):
        t = ""
        for r in range(4 * q, 4 * q + 4):
            t += "v_mul_f32 v%d, v%d, v%d\n" % (b + r, vSC, b + r)
        L += chunks(t, 4)
        t = ""
        for r in range(2 * q, 2 * q + 2):
            t += "v_cvt_pk_bf16_f32 v%d, v%d, v%d\n" % (b + r, b + 2 * r, b + 2 * r + 1)
        mat = q // 2
        d = 8 * mat + 2 * b2
        if q % 2 == 1:
            t = f"""
            {t}
            v_mad_u32_u24 v{TMP}, v{TMP}, s{sT2}, v{vL}
            v_permlane32_swap_b32 v{b+4*mat}, v{b+4*mat+2}
            v_permlane32_swap_b32 v{b+4*mat+1}, v{b+4*mat+3}
            """

            def f(t=t, mat=mat):
                A.many(t)
                if 'noqst' in AB:
                    handles["qst"] = handles["W0"]
                    return
                handles["qst"] = A.i("buffer_store_dwordx4 %s, v%d, %s, s%d offen%s" % (vr(b + 4 * mat, 4), TMP, srd(SRD_PK), sT0, STF))
            L.append(f)
        else:
            L.append(one(f"""
            s_add_u32 s{sT0}, s{sQA}, {d}
            s_mul_i32 s{sT1}, s{sT0}, 205
            s_add_u32 s{sT2}, s{sT1}, 205
            s_lshr_b32 s{sT1}, s{sT1}, 10
            s_lshr_b32 s{sT2}, s{sT2}, 10
            {t}
            s_sub_u32 s{sT2}, s{sT2}, s{sT1}
            s_mul_i32 s{sT2}, s{sT2}, {K}
            s_mul_i32 s{sT1}, s{sT1}, {K}
            v_lshrrev_b32 v{TMP}, 9, v{vL}
            s_lshl_b32 s{sT0}, s{sT0}, 9
            s_add_u32 s{sT0}, s{sT0}, s{sQB}
            s_add_u32 s{sT0}, s{sT0}, s{sT1}
            """))
    return L


vSG = vRS


def gu_epi(b, sb, off, n=4, fl=None):
    L = []
    for q in range(4):
        r = 2 * q
        L += chunks(f"""
        v_max_f32 v{b+r}, 0, v{b+r}
        v_mul_f32 v{b+8+r}, v{vSG}, v{b+8+r}
        v_max_f32 v{b+r+1}, 0, v{b+r+1}
        v_mul_f32 v{b+9+r}, v{vSG}, v{b+9+r}
        v_mul_f32 v{b+r}, v{b+r}, v{b+8+r}
        v_mul_f32 v{b+r+1}, v{b+r+1}, v{b+9+r}
        v_cvt_pk_bf16_f32 v{b+q}, v{b+r}, v{b+r+1}
        """, n)
    if 'nohst' not in AB:
        L.append(one("buffer_store_dwordx4 %s, v%d, %s, s%d offen offset:%d%s" % (vr(b, 4), vL, srd(SRD_WS), sb, off, STF if fl is None else fl)))
    return L


def h_setup():
    return [one(f"""
    s_and_b32 s{sT0}, s{sCG}, 3
    s_lshl1_add_u32 s{sT1}, s{sT0}, s{sCH}
    s_lshl_b32 s{sT2}, s{sT1}, 12
    s_add_u32 s{sHA}, s{sHBASE}, s{sT2}
    s_lshl2_add_u32 s{sT2}, s{sT0}, s{sCH}
    s_lshl_b32 s{sT2}, s{sT2}, 10
    s_add_u32 s{sHB}, s{sHBASE}, s{sT2}
    s_add_u32 s{sHB}, s{sHB}, {8*4096}
    """)]


def o_addr_txt():
    return f"""
    s_and_b32 s{sT0}, s{sCG}, 3
    s_lshl1_add_u32 s{sT1}, s{sT0}, s{sCH}
    s_lshl_b32 s{sT1}, s{sT1}, 8
    s_add_u32 s{sHT}, s{sHBASE}, s{sT1}
    s_add_u32 s{sHT}, s{sHT}, {16*4096}
    s_lshr_b32 s{sT1}, s{sT0}, 1
    s_lshl1_add_u32 s{sT1}, s{sCH}, s{sT1}
    s_and_b32 s{sT0}, s{sT0}, 1
    s_lshl2_add_u32 s{sT1}, s{sT1}, s{sT0}
    s_lshl_b32 s{sT1}, s{sT1}, 10
    s_add_u32 s{sHO}, s{sHBASE}, s{sT1}
    s_add_u32 s{sHO}, s{sHO}, {12*4096}
    """


def clear_fillers():
    st = lambda s, off: "buffer_store_dwordx4 %s, v%d, %s, s%d offen offset:%d%s" % (vr(TMP, 4), vL, srd(SRD_WS), s, off, STF)
    L = [one(o_addr_txt()), one("\n".join("v_mov_b32 v%d, -1" % (TMP + k) for k in range(4))), one(st(sHO, 0)), lambda: None,
         one(f"s_mov_b64 exec, 0xffff\n{st(sHT, 0)}\ns_mov_b64 exec, -1")]
    return [] if 'noclr' in AB else L


def kv_fillers():
    va = TMP + 1
    L = [one(f"""
    v_lshrrev_b32 v{va}, 3, v{vL}
    v_and_b32 v{va}, 64, v{va}
    v_xor_b32 v{va}, v{va}, v{vL}
    s_lshl2_add_u32 s{sT0}, s{sRB}, s{sW}
    s_sub_i32 s{sT0}, s{sT0}, 8
    s_max_i32 s{sT0}, s{sT0}, 0
    s_mul_i32 s{sT0}, s{sT0}, 7680
    s_mul_i32 s{sT1}, s{sCG}, {HPS}
    s_add_u32 s{sD2}, s{sT0}, s{sT1}
    s_add_u32 s{sD2}, s{sD2}, 2560
    s_mul_i32 s{sD3}, s{sW}, {KVS}
    """)]
    for pc in range(4):
        L.append(lambda pc=pc: dma(va, SRD_WS, sD2, sD3, KVB + 1024 * pc, off=1024 * pc))
    L.append(lambda: dma(va, SRD_WS, sD2, sD3, KVB + 4096, mid="s_add_u32 s%d, s%d, 4096" % (sD2, sD2)))
    L.append(one(f"""
    s_mul_i32 s{sT0}, s{sRT}, 7680
    s_mul_i32 s{sT1}, s{sCG}, {HPS}
    s_add_u32 s{sD0}, s{sT0}, s{sT1}
    s_lshl_b32 s{sT0}, s{sCH}, 11
    s_add_u32 s{sD2}, s{sD0}, s{sT0}
    s_add_u32 s{sD2}, s{sD2}, 2560
    s_mul_i32 s{sD3}, s{sRU}, {KVS}
    s_add_u32 s{sD3}, s{sD3}, s{sT0}
    """))
    for pc in range(3):
        def f(pc=pc):
            handles["KV"] = dma(va, SRD_WS, sD2, sD3, KVB + 8 * KVS + 1024 * pc, off=1024 * pc)
        L.append(f)
    return L


def pad_fillers():
    t, a = TMP + 2, TMP

    def last():
        A.many(f"""
        v_mov_b32 v{t}, 0x3f803f80
        v_mov_b32 v{t+1}, 0x3f803f80
        """)
        handles["pad"] = A.i(f"ds_write_b64 v{a}, {vr(t,2)} offset:8")
    return [one(f"""
    v_lshrrev_b32 v{a}, 4, v{vL}
    v_min_u32 v{a}, 11, v{a}
    s_lshl_b32 s{sT0}, s{sRB}, 2
    s_sub_i32 s{sT0}, 8, s{sT0}
    v_cmp_gt_i32 vcc, s{sT0}, v{a}
    v_mov_b32 v{t}, 0x3f800000
    v_mov_b32 v{t+1}, 0x3f80fe80
    v_cndmask_b32 v{t}, v{t}, v{t+1}, vcc
    """), one(f"""
    v_mov_b32 v{t+1}, 0
    v_mul_u32_u24 v{a}, {KVS}, v{a}
    v_add_u32 v{a}, {KVB + 5120}, v{a}
    ds_write_b64 v{a}, {vr(t,2)}
    """), last]


def mask_fillers():
    t = TMP + 2
    L = [one(f"""
    v_bfe_u32 v{t}, v{vL}, 4, 5
    v_lshrrev_b32 v{t+1}, 9, v{vL}
    v_lshlrev_b32 v{t+1}, 2, v{t+1}
    v_sub_u32 v{t}, v{t}, v{t+1}
    """)]
    for q in range(4):
        L.append(one("\n".join("v_cmp_gt_i32 %s, %d, v%d" % (sr(sMASK + 2 * r, 2), 8 * (r // 4) + r % 4, t)
                               for r in range(4 * q, 4 * q + 4))))
    return L


QM = (A1 + 4, A1 + 8)
QT = A1 + 12


def q_loads():
    A.i(f"v_and_b32 v{vF0}, 0x1f0, v{vL}")
    A.i(f"buffer_load_dwordx4 {vr(QM[0],4)}, v{vL}, {srd(SRD_WS)}, s{sD0} offen")
    A.i(f"buffer_load_dwordx4 {vr(QT,4)}, v{vF0}, {srd(SRD_WS)}, s{sD0} offen offset:1024")
    A.i(f"buffer_load_dwordx4 {vr(QM[1],4)}, v{vL}, {srd(SRD_WS)}, s{sD0} offen offset:1536")


JNB = opt('jnb', 24)
NPD, JP, NPS = opt('npd', 37), opt('jp', 6), opt('npks', 64)
NCL = opt('ncl', 108)
MAXW = opt('maxw', 2)
DP4 = [int(c) for c in opt('dp4', '5713')]
DP2 = [int(c) for c in opt('dp2', '51')]
at = {}
NTOT = 200


def sched(n, f):
    at.setdefault(n, []).append(f)


def next_w():
    for j in range(25):
        if j not in waddr:
            return j


def gemm():
    A.wait_vm_lg0(handles["W0"])
    estamp("arr0")
    A.i("s_barrier")
    for n in range(4):
        frag_read(n)
    estamp("clk0", force=True, clk=True)
    estamp("clk0r", force=True)
    eflush()
    stamp("b-1")
    pre = {JP: ["PK"]}
    if 'PK' not in PQ:
        sched(NPD, pack_dma())
    sched(NPS, pack_st(0))
    sched(NPS + 2, pack_st(1))
    assert 8 * JP + 4 < NPS and NPS + 2 < 70
    if opt('prio', 0):
        A.i("s_cmp_eq_u32 s%d, 0" % sCH)
        A.i("s_cbranch_scc1 L_np")
        A.i("s_setprio 1")
        A.label("L_np")

    def waits(J):
        for h in pre.get(J, []) + (["X%d" % (J + 1)] if J < 9 else []) + (["W%d" % (24 if J == JNB - 1 else J + 1)] if J < 24 else []):
            while h not in handles:
                assert dmaq, h
                pump(1, dmaq)
            A.wait_vm(handles[h])

    for n in range(NTOT):
        J, p = divmod(n, 8)
        last = J in LAST
        hi, i = hi_i(n)
        if n == 84:
            drain()
        mm(acc_of(J, hi), rreg[n], x_of(J, hi, i), (J in (0, 10) and i == 0) or n == 160)
        if p in (0, 4) and not last:
            cs_mm(CS1 if hi else CS0, rreg[n], J in (0, 10, 20))
        if p == 7 and J + 1 in LAST:
            cs_mm(CS0, rreg[n + 1], False)
            cs_mm(CS1, rreg[n + 2], False)
        rfree.append(rreg[n])
        if p == 4:
            A.comment("sync %d" % J)
            waits(J)
            if last:
                A.wait_lg(handles["csw"])
            if J < JNB or last:
                A.i("s_barrier")
            if last:
                cs_read()
        if n + 4 < NTOT:
            frag_read(n + 4)
        if p == 4 and (FINE or J in (0, 4, 9, 14, 19, 24)):
            stamp("b%d" % J)
        if p == 0 and last:
            cs_write()
        if p == 4:
            if J >= 1:
                release("W%d" % (J - 1))
            if J < 10:
                release("X%d" % J)
            if J == JP + 1:
                release("PK")
            x = issue_x(J + NXS) if J + NXS < 10 else []
            new = []
            while next_w() is not None and len(new) < (2 if x else 2 * MAXW):
                w = issue_w(next_w())
                if w is None:
                    break
                new += w
            if x and new:
                new = [x[0], new[0], x[1], new[1]]
            else:
                new = x + new
            dmaq.extend(new)
            if J == 0:
                if 'notok' not in AB:
                    A.i("buffer_load_dword v%d, off, %s, 0 offset:128 sc1" % (vTOKV, srd(SRD_DBG)))
                fill.extend(row_stats())
            if J == JP:
                pack_rd()
                fill.append(one(f"""
                s_mov_b64 {sr(SRD_PK,2)}, {sr(SRD_WS,2)}
                s_cmp_eq_u32 s{sCG}, 15
                s_cselect_b32 s{SRD_PK+2}, 0, {HO_OFF}
                """))
            if J == 10:
                fill.extend(qkv_epi(A1, 1))
        if n == opt('nps', 26):
            fill.append(pub_stats)
        if n == opt('nsl', 54):
            fill.append(one(f"buffer_load_dwordx2 {vr(vGR,2)}, v{vSTA}, {srd(SRD_WS)}, 0 offen sc1"))
        if n == NCL:
            assert "qst" in handles and not fill
            fill.extend(h_setup() + clear_fillers())
        if n == 73:
            def stats_use():
                if 'nostat' not in AB:
                    poll_check(vSTA, vGR, n=2, tokreg=vGR + 1)
                A.many(f"""
                v_and_b32 v{vGR+1}, 0xffff0000, v{vGR}
                v_and_b32 v{vGR}, 0xffff, v{vGR}
                v_rcp_f32 v{vRS}, v{vGR+1}
                v_lshl_or_b32 v{vGR}, v{vGR}, 16, v{vGR}
                s_cmp_lt_u32 s{sCG}, 5
                s_cselect_b32 s{sI0}, 0x{f2u(QSCALE):08x}, 1.0
                v_cndmask_b32 v{vNM}, v{vGR}, 0, {sr(sHI,2)}
                v_cndmask_b32 v{vNM+1}, 0, v{vGR}, {sr(sHI,2)}
                v_mul_f32 v{vSC}, s{sI0}, v{vRS}
                v_mul_f32 v{vSG}, v{vRS}, v{vRS}
                """)
            fill.appendleft(stats_use)
        if p == 5 and last:
            cs_split()
        if p in (6, 7) and last:
            cs_corr(acc_of(J, p - 6), p - 6)
        if n == 79:
            drain()
            fill.extend(qkv_epi(A0, 0))
        if n == 160:
            fill.extend(gu_epi(A2, sHA, 0) + gu_epi(A0, sHA, 1024))
        for f in at.get(n, []):
            f()
        if p in (DP4 if len(dmaq) > 2 or J < 10 else DP2) or len(dmaq) > 4:
            pump(1, dmaq)
        if not (last and p in (0, 5)):
            pump(2 if 80 <= n < 84 else 1)
    drain()
    assert not dmaq and next_w() is None
    stamp("gend")
    for f in gu_epi(A1, sHB, 0, fl=STL):
        f()
    end_stamps()


FACC = 16
vCK = 6
XR, vXO, vRW, vRR = 8, 14, 15, 1
sFH, sFW = sD2, sD3
lst = lambda s: [int(x) for x in s.split(',')]


class Fin:
    def __init__(self, name, steps, vHA, vWL):
        self.name, self.steps, self.vHA, self.vWL = name, steps, vHA, vWL
        self.pool = deque()
        self.h, self.w = {}, {}
        self.kh = self.kw = 0
        self.allow = 0
        self.cur = {}
        self.ready = False
        self.res = opt('res', 2)

    def setup(self):
        def done():
            self.ready = True
        return chunks(f"""
        s_mul_i32 s{sT0}, s{sCG8}, {WPS}
        s_mul_i32 s{sT1}, s{sRU}, {WP_KQ}
        s_add_u32 s{sT0}, s{sT0}, s{sT1}
        s_add_u32 s{sT0}, s{sT0}, {WP_OFF}
        v_add_u32 v{self.vWL}, s{sT0}, v{vL}
        s_mul_i32 s{sT0}, s{sRG}, {HO_RG}
        s_mul_i32 s{sT1}, s{sRU}, {HO_KQ}
        s_add_u32 s{sT0}, s{sT0}, s{sT1}
        s_add_u32 s{sT0}, s{sT0}, {HO_OFF}
        v_and_b32 v{self.vHA}, 0x300, v{vL}
        v_add3_u32 v{self.vHA}, v{self.vHA}, v{vL}, s{sT0}
        """, 11) + [done]

    def so(self, s, v):
        if self.cur.get(s) != v:
            A.i("s_mov_b32 s%d, %d" % (s, v))
            self.cur[s] = v

    def hload(self, B, k, j, so):
        return B.i("buffer_load_dwordx4 %s, v%d, %s, s%d offen offset:%d%s" % (
            vr(self.h[k, j], 4), self.vHA, srd(SRD_WS), so, (j >> 1) * 2048 + (j & 1) * 256, " sc1" if self.steps[k] >= 12 else ""))

    def issue(self):
        n = len(self.steps)
        if not self.pool or not self.ready:
            return False
        sh, sw = self.kh // 4, self.kw // 5
        hok = sh < n and (self.steps[sh] < 12 or sh < self.allow)
        wok = sw < n and len(self.pool) > max(0, 4 * (min(sw, sh + self.res) + 1) - self.kh)
        if hok and (sh <= sw or not wok):
            j = self.kh % 4
            self.h[sh, j] = self.pool.popleft()
            self.so(sFH, self.steps[sh] * 4096)
            self.hload(A, sh, j, sFH)
            self.kh += 1
            return True
        if wok:
            t = self.kw % 5
            self.w[sw, t] = self.pool.popleft()
            self.so(sFW, self.steps[sw] * 5120 + (t // 4) * 4096)
            A.i("buffer_load_dwordx4 %s, v%d, %s, s%d offen offset:%d" % (
                vr(self.w[sw, t], 4), self.vWL, srd(SRD_WS), sFW, (t % 4) * 1024))
            self.kw += 1
            return True
        return False

    def check(self, B, k):
        r = [self.h[k, j] + e for j in range(4) for e in range(4)]
        B.i(f"v_max3_u32 v{vCK}, v{r[0]}, v{r[1]}, v{r[2]}")
        B.i(f"v_max3_u32 v{vCK+1}, v{r[3]}, v{r[4]}, v{r[5]}")
        for q in range(5):
            B.i(f"v_max3_u32 v{vCK+q%2}, v{vCK+q%2}, v{r[6+2*q]}, v{r[7+2*q]}")
        B.i(f"v_max_u32 v{vCK}, v{vCK}, v{vCK+1}")
        B.i(f"v_cmp_eq_u32 vcc, -1, v{vCK}")

    def retry(self, k):
        nm = "%s%d" % (self.name, k)
        B = Asm()
        B.label("L_hr" + nm)
        B.i("s_mov_b32 s%d, 0" % sI1)
        B.i("s_mov_b32 s%d, %d" % (sI0, self.steps[k] * 4096))
        B.label("L_hl" + nm)
        for j in range(4):
            self.hload(B, k, j, sI0)
        B.i("s_add_u32 s%d, s%d, 1" % (sI1, sI1))
        B.wait(nv=0)
        self.check(B, k)
        B.i("s_cmp_gt_u32 s%d, 200000" % sI1)
        B.i("s_cbranch_scc1 L_hb" + nm)
        B.i("s_cbranch_vccnz L_hl" + nm)
        B.i("s_branch L_hb" + nm)
        OOL.append(B.text())

    def run(self, allow, kbar, nblk, col0):
        n = len(self.steps)
        LAG = 4
        for k in range(n):
            self.allow = max(self.allow, allow.get(k, 0), k + 1)
            while self.kh < 4 * (k + 1):
                assert self.issue()
            if k == kbar:
                A.i("s_barrier")
                stamp("bM")
            if k == 2:
                fill.extend(chunks(f"""
                s_lshl2_add_u32 s{sT0}, s{sRG}, s{sRU}
                s_mul_i32 s{sT0}, s{sT0}, {16*1280}
                s_mul_i32 s{sT1}, s{sCG8}, 160
                s_add_u32 s{sT0}, s{sT0}, s{sT1}
                v_bfe_u32 v{vXO}, v{vL}, 4, 4
                v_mul_u32_u24 v{vXO}, 1280, v{vXO}
                v_lshrrev_b32 v{vRW}, 8, v{vL}
                v_lshl_add_u32 v{vXO}, v{vRW}, 3, v{vXO}
                v_add_u32 v{vXO}, s{sT0}, v{vXO}
                s_mul_i32 s{sT0}, s{sW}, {RWS}
                v_add_u32 v{vRW}, s{sT0}, v{vL}
                v_add_u32 v{vRR}, s{sW1K}, v{vL}
                v_add_u32 v{vRR+1}, {3*RWS}, v{vRR}
                v_add_u32 v{vRR+2}, {6*RWS}, v{vRR}
                """, 4))
                for b in range(nblk):
                    fill.append(one(f"buffer_load_dwordx2 {vr(XR+2*b,2)}, v{vXO}, {srd(SRD_X)}, 0 offen offset:{col0+64*b}"))
            if self.steps[k] >= 12:
                self.check(A, k)
                A.i("s_cbranch_vccnz L_hr%s%d" % (self.name, k))
                A.label("L_hb%s%d" % (self.name, k))
                self.retry(k)
            if FINE or k in (0, 4, n - 1):
                stamp("hc%d" % k)
            for m in range(20):
                t, j = divmod(m, 4)
                while (k, t) not in self.w:
                    assert self.issue()
                a = FACC + 4 * m
                A.i("v_mfma_f32_16x16x32_bf16 %s, %s, %s, %s" % (vr(a, 4), vr(self.w[k, t], 4), vr(self.h[k, j], 4), "0" if k == 0 else vr(a, 4)))
                if j == 3:
                    self.pool.append(self.w[k, t])
                if t == 4:
                    self.pool.append(self.h[k, j])
                self.issue()
                pump()
                if k == n - 1 and m >= LAG:
                    A.i("ds_write_b128 v%d, %s offset:%d" % (vRW, vr(FACC + 4 * (m - LAG), 4), 1024 * (m - LAG)))
        assert not fill
        stamp("fend")
        o = 192
        for b in range(nblk):
            for r in range(2):
                A.i("v_lshlrev_b32 v%d, 16, v%d" % (o + 4 * b + 2 * r, XR + 2 * b + r))
                A.i("v_and_b32 v%d, 0xffff0000, v%d" % (o + 4 * b + 2 * r + 1, XR + 2 * b + r))
        for m in range(20 - LAG, 20):
            A.i("ds_write_b128 v%d, %s offset:%d" % (vRW, vr(FACC + 4 * m, 4), 1024 * m))
        A.wait(nl=0)
        A.i("s_barrier")
        stamp("bR")
        for b in range(nblk):
            for w in range(8):
                A.i("ds_read_b128 %s, v%d offset:%d" % (vr(96 + 32 * b + 4 * w, 4), vRR + w // 3, (w % 3) * RWS + 8192 * b))
        for b in range(nblk):
            r0 = 96 + 32 * b
            pk = lambda d, x, y: [A.i("v_pk_add_f32 %s, %s, %s" % (vr(d + e, 2), vr(x + e, 2), vr(y + e, 2))) for e in (0, 2)]
            pk(o + 4 * b, o + 4 * b, r0)
            pk(r0 + 4, r0 + 4, r0 + 8)
            pk(o + 4 * b, o + 4 * b, r0 + 12)
            pk(r0 + 4, r0 + 4, r0 + 16)
            pk(o + 4 * b, o + 4 * b, r0 + 20)
            pk(r0 + 4, r0 + 4, r0 + 24)
            pk(o + 4 * b, o + 4 * b, r0 + 28)
            pk(o + 4 * b, o + 4 * b, r0 + 4)
            for r in range(2):
                A.i("v_cvt_pk_bf16_f32 v%d, v%d, v%d" % (XR + 2 * b + r, o + 4 * b + 2 * r, o + 4 * b + 2 * r + 1))
            A.i(f"buffer_store_dwordx2 {vr(XR+2*b,2)}, v{vXO}, {srd(SRD_OUT)}, 0 offen offset:{col0+64*b}")
        end_stamps()


def end_stamps():
    if STAMPS:
        nstamp[0] = 62
        A.wait(nv=0)
        stamp("end")
        stamp("clk1", clk=True)
        A.i("v_lshrrev_b32 v%d, 2, v%d" % (vL, vL))
        A.i("buffer_store_dword v%d, v%d, %s, s%d offen" % (vST[0], vL, srd(SRD_WS), sSTAMP))


def k2_prologue():
    kern[0] = 1
    nstamp[0] = 0
    del early[:]
    vST[0] = 4
    A.many(f"""
    s_cmp_ge_u32 s2, 256
    s_cbranch_scc1 L_end2
    s_load_dwordx2 s[74:75], s[0:1], 72
    s_load_dwordx2 s[56:57], s[0:1], 0
    s_load_dwordx2 s[70:71], s[0:1], 56
    s_memrealtime s[76:77]
    v_lshrrev_b32 v1, 6, v0
    v_and_b32 v0, 63, v0
    s_lshr_b32 s{sT1}, s2, 3
    s_and_b32 s{sT0}, s2, 7
    v_readfirstlane_b32 s{sW}, v1
    v_lshlrev_b32 v{vL}, 4, v0
    s_and_b32 s{sT2}, s{sT1}, 7
    s_lshr_b32 s{sT3}, s{sT1}, 3
    s_and_b32 s{sRB}, s{sT0}, 1
    s_bfe_u32 s{sT4}, s{sT0}, 0x10001
    s_lshl1_add_u32 s{sRG}, s{sRB}, s{sT4}
    s_lshl3_add_u32 s{sRG}, s{sRG}, s{sT2}
    s_lshl3_add_u32 s{sRB}, s{sRB}, s{sT2}
    s_lshr_b32 s{sCG}, s{sT0}, 1
    s_lshl2_add_u32 s{sCG}, s{sCG}, s{sT3}
    s_lshr_b32 s{sCG8}, s{sT0}, 2
    s_lshl2_add_u32 s{sCG8}, s{sCG8}, s{sT3}
    s_and_b32 s{sW}, s{sW}, 7
    s_and_b32 s{sRU}, s{sW}, 3
    s_lshr_b32 s{sCH}, s{sW}, 2
    s_lshl_b32 s{sW1K}, s{sW}, 10
    s_lshl2_add_u32 s{sRT}, s{sRB}, s{sRU}
    s_mov_b32 s{SRD_WS+2}, {WS_BYTES}
    s_mov_b32 s{SRD_WS+3}, 0x00020000
    """)
    kv = kv_fillers()
    kv[0]()
    A.i(f"s_mov_b64 {sr(SRD_WS,2)}, s[74:75]")
    for f in kv[1:]:
        f()
    A.many(f"""
    {mk_srd(SRD_X, 56, 2048 * 1280)}
    {mk_srd(SRD_OUT, 70, 2048 * 1280)}
    s_mov_b32 s{sHI}, 0
    s_mov_b32 s{sHI+1}, -1
    """)
    if STAMPS:
        A.i("s_lshl3_add_u32 s%d, s2, s%d" % (sSTAMP, sW))
        A.i("s_lshl_b32 s%d, s%d, 8" % (sSTAMP, sSTAMP))
        A.i("s_add_u32 s%d, s%d, %d" % (sSTAMP, sSTAMP, STAMP_OFF + 2048 * 256))
        A.i("s_mov_b32 s%d, s76" % ESR[0])
        early.append("start")
        estamp("clk0", force=True, clk=True)
        estamp("clk0r", force=True)
        eflush()


def g_path():
    role[0] = 'G'
    F = Fin('g', lst(opt('gst', '0,1,2,3,4,5,6,7,12,8,14')), 96, 97)
    F.pool.extend(range(100, 256, 4))
    for f in F.setup():
        f()
    for _ in range(opt('gpre', 11)):
        F.issue()
    A.wait_vm(handles["KV"])
    A.i("s_barrier")
    stamp("bK")
    for _ in range(opt('gpost', 9)):
        F.issue()
    al = lst(opt('gal', '0,0,0,0,0,0,9,9,9,11,11'))
    n = len(F.steps)
    F.run(dict(enumerate(al)), n - opt('gbm', 1), 3, 0)


SB = (8, 24, A2)
OO, PP, KMR, KTR, VVR, PM, TQ = (A0, 160), 96, 112, 124, 132, 148, 156
vKA, vKT, vVA = (1, 2), (3, 5), (44, 40)
vM = A1
sBAD = sQA
KO = [8, 0, 1, 2, 3, 4, 5, 6, 7]
kord = deque([0, 1, 2, 3, 4, 5, 6, 7, 9, 8] + list(range(10, 18)))
kfree, kslot = deque(range(3)), {}
vord = deque((h, t) for h in range(2) for t in (0, 8, 1, 2, 3, 4, 5, 6, 7))
vfree, vslot = deque(range(2)), {}


def k_read():
    while kord and kfree:
        kk = kord.popleft()
        c = kslot[kk] = kfree.popleft()
        h, k = divmod(kk, 9)
        t = KO[k]
        A.i("ds_read_b128 %s, v%d offset:%d" % (vr(KMR + 4 * c, 4), vKA[h], t * KVS))
        A.i("ds_read_b64 %s, v%d offset:%d" % (vr(KTR + 2 * c, 2), vKT[h], t * KVS))


def v_read():
    while vord and vfree:
        h, t = vord.popleft()
        c = vslot[h, t] = vfree.popleft()
        for k in range(4):
            A.i("ds_read_b64_tr_b16 %s, v%d offset:%d" % (vr(VVR + 8 * c + 2 * k, 2), vVA[h] + k, t * KVS))


def qk_main(kk, dst):
    A.i("v_mfma_f32_32x32x16_bf16 %s, %s, %s, 0" % (vr(dst, 16), vr(KMR + 4 * kslot[kk], 4), vr(QM[kk // 9], 4)))


def qk_tail(kk, dst):
    A.i("v_mfma_f32_32x32x8_bf16 %s, %s, %s, %s" % (vr(dst, 16), vr(KTR + 2 * kslot[kk], 2), vr(QT + 2 * (kk // 9), 2), vr(dst, 16)))
    kfree.append(kslot[kk])
    k_read()


def pv(h, t, s, p):
    o = vr(OO[h], 16)
    A.i("v_mfma_f32_32x32x16_bf16 %s, %s, %s, %s" % (o, vr(VVR + 8 * vslot[h, t] + 4 * s, 4), vr(p + 4 * s, 4), "0" if (t, s) == (0, 0) else o))
    if s == 1:
        vfree.append(vslot[h, t])
        v_read()


def max_fillers(S, h):
    t = "v_max3_f32 v%d, v%d, v%d, v%d\nv_max3_f32 v%d, v%d, v%d, v%d\n" % (vM, S, S + 1, S + 2, vM + 1, S + 3, S + 4, S + 5)
    for r in range(6, 16, 2):
        t += "v_max3_f32 v%d, v%d, v%d, v%d\n" % (vM + (r // 2) % 2, S + r, S + r + 1, vM + (r // 2) % 2)
    t += f"""
    v_max_f32 v{vM}, v{vM}, v{vM+1}
    v_mov_b32 v{vM+1}, v{vM}
    """
    return chunks(t, 5) + [one(f"""
    v_permlane32_swap_b32 v{vM+1}, v{vM}
    v_max_f32 v{vM}, v{vM}, v{vM+1}
    v_cvt_pk_bf16_f32 v{vM}, 1.0, -v{vM}
    v_cndmask_b32 v{QT+2*h}, v{QT+2*h}, v{vM}, {sr(sHI,2)}
    """)]


def merge_txt(d, s):
    return "\n".join("v_cndmask_b32 v%d, v%d, v%d, %s" % (d + r, d + r, s + r, sr(sMASK + 2 * r, 2)) for r in range(16))


def chk_txt(h):
    return f"""
    s_mov_b32 s{sT0}, 0x{f2u(2.0**-60):08x}
    s_mov_b32 s{sT1}, 0x{f2u(2.0**60):08x}
    v_cmp_nlt_f32 vcc, s{sT0}, v{OO[h]+12}
    v_cmp_ngt_f32 {sr(sT3,2)}, s{sT1}, v{OO[h]+12}
    s_or_b64 vcc, vcc, {sr(sT3,2)}
    """


def o_txt(h, so):
    r = vM + 2
    O = OO[h]
    t = "v_rcp_f32 v%d, v%d\n" % (r, O + 12)
    for k in range(12):
        t += "v_mul_f32 v%d, v%d, v%d\n" % (O + k, r, O + k)
    d = [O + k for k in range(4)] + [TQ + 2 * h, TQ + 2 * h + 1]
    for k in range(6):
        t += "v_cvt_pk_bf16_f32 v%d, v%d, v%d\n" % (d[k], O + 2 * k, O + 2 * k + 1)
    for k in range(6):
        t += "v_min_u32 v%d, -2, v%d\n" % (d[k], d[k])
    t += "buffer_store_dwordx4 %s, v%d, %s, s%d offen sc1\n" % (vr(O, 4), vL, srd(SRD_WS), so)
    return t


def a_path():
    role[0] = 'A'
    A.label("L_A")
    q_loads()
    F = Fin('a', lst(opt('ast', '9,10,11,13,15,16')), 130, 131)
    F.pool.extend(range(176, 256, 4))
    t0, t1, t2, t3 = vM + 2, vM + 3, 6, vM
    m = sr(sT3, 2)
    assert sT3 % 2 == 0
    A.i(f"s_setprio {opt('aprio', 2)}")
    for f in pad_fillers() + mask_fillers() + F.setup():
        f()
    A.many(f"""
    s_lshr_b32 s{sT0}, s{sRT}, 1
    s_mul_i32 s{sHBASE}, s{sT0}, {HO_RG}
    s_lshr_b32 s{sT0}, s{sCG}, 2
    s_mul_i32 s{sT0}, s{sT0}, {HO_KQ}
    s_add_u32 s{sHBASE}, s{sHBASE}, s{sT0}
    s_and_b32 s{sT0}, s{sRU}, 1
    s_lshl_b32 s{sT0}, s{sT0}, 11
    s_add_u32 s{sHBASE}, s{sHBASE}, s{sT0}
    s_add_u32 s{sHBASE}, s{sHBASE}, {HO_OFF}
    {o_addr_txt()}
    s_mul_i32 s{sD1}, s{sRU}, {KVS}
    s_add_u32 s{sD1}, s{sD1}, {KVB}
    v_lshrrev_b32 v{t1}, 9, v{vL}
    v_lshlrev_b32 v{t2}, 6, v{t1}
    v_xor_b32 v{t2}, v{t2}, v{vL}
    v_add_u32 v{vKA[0]}, s{sD1}, v{t2}
    v_and_b32 v{t0}, 0x1f0, v{vL}
    v_mov_b32 v{t3}, {5120-1024}
    v_cndmask_b32 v{t0}, v{t0}, v{t3}, {sr(sHI,2)}
    s_add_u32 s{sT0}, s{sD1}, 1024
    v_add_u32 v{vKT[0]}, s{sT0}, v{t0}
    s_add_u32 s{sT0}, s{sD1}, 1536
    v_xor_b32 v{t2}, 64, v{t2}
    v_add_u32 v{vKA[1]}, s{sT0}, v{t2}
    v_cndmask_b32 v{t0}, 8, 0, {sr(sHI,2)}
    v_add_u32 v{vKT[1]}, v{t0}, v{vKT[0]}
    """)
    V0, V1 = vVA
    A.many(f"""
    v_bfe_u32 v{t0}, v{vL}, 5, 1
    v_bfe_u32 v{t2}, v{vL}, 4, 1
    v_and_b32 v{V0+1}, 0x130, v{vL}
    s_movk_i32 s{sT0}, 0xff
    v_cmp_lt_u32 vcc, s{sT0}, v{V0+1}
    s_movk_i32 s{sT0}, 0x100
    v_cmp_lt_u32 {m}, s{sT0}, v{V0+1}
    v_cndmask_b32 v{t0}, v{t0}, 2, vcc
    v_cndmask_b32 v{t2}, v{t2}, 0, vcc
    v_lshlrev_b32 v{V0}, 3, v{t2}
    v_lshl_add_u32 v{V0}, v{t0}, 9, v{V0}
    v_xor_b32 v{t0}, v{t0}, v{t1}
    v_and_b32 v{t0}, 1, v{t0}
    v_xor_b32 v{t0}, 1, v{t0}
    v_lshl_add_u32 v{V0}, v{t0}, 6, v{V0}
    v_bfe_u32 v{t0}, v{vL}, 6, 2
    v_lshl_add_u32 v{V0}, v{t0}, 4, v{V0}
    v_xor_b32 v{V1}, 64, v{V0}
    v_add_u32 v{V1}, 1536, v{V1}
    v_add_u32 v{t0}, 8, v{V0}
    v_cndmask_b32 v{V1}, v{V1}, v{t0}, vcc
    v_mov_b32 v{t0}, {5128 - 2560}
    v_mov_b32 v{t2}, 128
    v_cndmask_b32 v{V0}, v{V0}, v{t0}, {m}
    v_cndmask_b32 v{V1}, v{V1}, v{t0}, {m}
    v_cndmask_b32 v{t2}, v{t2}, 0, {m}
    s_add_u32 s{sT0}, s{sD1}, 2560
    v_add_u32 v{V0}, s{sT0}, v{V0}
    v_add_u32 v{V1}, s{sT0}, v{V1}
    v_add_u32 v{V0+1}, v{V0}, v{t2}
    v_add_u32 v{V0+2}, v{V0+1}, v{t2}
    v_add_u32 v{V0+3}, v{V0+2}, v{t2}
    v_add_u32 v{V1+1}, v{V1}, v{t2}
    v_add_u32 v{V1+2}, v{V1+1}, v{t2}
    v_add_u32 v{V1+3}, v{V1+2}, v{t2}
    v_mov_b32 v{t0}, 0xffff0000
    """)
    for j in range(8):
        A.i("v_cndmask_b32 v%d, 0, v%d, %s" % (PM + j, t0, sr(sMASK + 2 * (2 * j + 1), 2)))
        A.i("v_cndmask_b32 v%d, v%d, -1, %s" % (PM + j, PM + j, sr(sMASK + 2 * (2 * j), 2)))
    A.wait_vm_lg0(handles["KV"])
    A.i("s_barrier")
    k_read()
    v_read()
    stamp("bK")
    B0, B1, B2 = SB
    qk_main(0, B0)
    qk_main(1, B1)
    for f in max_fillers(B0, 0):
        f()
    qk_tail(0, B0)
    qk_tail(1, B1)
    qk_main(2, B2)
    A.many(merge_txt(B0, B1))
    stamp("att0")
    bufs = [B0, B2] * 4 + [B1, B2] * 4
    POS = {3: [5, 10, 15], 4: [3, 7, 11, 15], 5: [2, 5, 8, 12, 15], 6: [-1, 2, 5, 9, 12, 15], 2: [3, 15]}
    P2 = PP + 8
    split = lambda js: "\n".join("v_bfi_b32 v%d, v%d, 0, v%d\nv_and_b32 v%d, v%d, v%d" % (
        P2 + j, PM + j, PP + j, PP + j, PM + j, PP + j) for j in js)
    for g in range(16):
        h, idx = divmod(g, 8)
        b = bufs[g]
        p = PP + 8 * (idx % 2)
        kk = g + 2 if g < 7 else g + 3
        nb = B0 if g == 7 else bufs[g + 1] if g < 15 else None
        M = lambda kk=kk, nb=nb: qk_main(kk, nb)
        T = lambda kk=kk, nb=nb: qk_tail(kk, nb)
        own = lambda: pv(h, idx, 0, p)
        prev = lambda: pv((g - 1) // 8, (g - 1) % 8, 1, PP + 8 * ((g - 1) % 2))
        if g == 0:
            job = [T, own]
        elif idx == 1:
            job = [lambda: pv(h, 8, 0, P2), lambda: pv(h, 8, 1, P2), M, T, prev, own]
        elif g == 5:
            job = [M, T, lambda: qk_main(9, B1), prev, own]
        elif g == 6:
            job = [M, T, prev, lambda: (drain(), qk_tail(9, B1)), own]
            fill.extend(max_fillers(B1, 1))
        elif g == 15:
            job = [prev, own]
        else:
            job = [M, T, prev, own]
        job = dict(zip(POS[len(job)], job))
        if g == 9:
            fill.extend([one(chk_txt(0) + f"""
            {"s_mov_b64 vcc, -1" if FORCESLOW else ""}
            s_cmp_lg_u64 vcc, 0
            s_cselect_b32 s{sBAD}, 1, 0
            s_sub_u32 s{sD0}, s{sHO}, 8192
            s_cmp_lg_u32 s{sBAD}, 0
            s_cselect_b32 s{sD1}, 0x7ffffff0, s{sD0}
            """)] + chunks(o_txt(0, sD1), 4))
        if -1 in job:
            job[-1]()
        for r in range(16):
            A.i("v_exp_f32 v%d, v%d" % (b + r, b + r))
            if r % 2 == 1 and r >= 3:
                A.i("v_cvt_pk_bf16_f32 v%d, v%d, v%d" % (p + (r - 3) // 2, b + r - 3, b + r - 2))
            if idx == 0 and r == 10:
                A.many(split(range(4)))
            if g == 7 and r == 12:
                A.many(merge_txt(B1, B0))
            if r in job:
                job[r]()
            if r % 2 == 0:
                pump()
            if r in (4, 10, 13)[:opt('arate', 2)]:
                F.issue()
        A.i("v_cvt_pk_bf16_f32 v%d, v%d, v%d" % (p + 7, b + 14, b + 15))
        if idx == 0:
            A.many(split(range(4, 8)))
        if g == 7:
            stamp("att1")
    drain()
    pv(1, 7, 1, P2)
    F.pool.extend(q for q in range(112, 156, 4) if q != 128)
    stamp("att")
    A.many(chk_txt(1))
    A.i("s_branch L_slow1" if FORCESLOW else "s_cbranch_vccnz L_slow1")
    A.label("L_back1")
    A.many(o_txt(1, sHO))
    A.i("s_cmp_lg_u32 s%d, 0" % sBAD)
    A.i("s_cbranch_scc1 L_slow0")
    A.label("L_back0")
    A.many(f"""
    s_sub_u32 s{sT0}, s{sHT}, 256
    s_mov_b64 exec, 0xffffffff
    buffer_store_dwordx4 {vr(TQ,4)}, v{vL}, {srd(SRD_WS)}, s{sT0} offen sc1
    s_mov_b64 exec, -1
    s_setprio 0
    """)
    F.pool.extend([96, 100, 104, 108, 164, 168, 172, 160, 156])
    al = lst(opt('aal', '4,4,4,6,6,6'))
    n = len(F.steps)
    F.run(dict(enumerate(al)), n - opt('abm', 1), 2, 32)
    A.i("s_endpgm")


def slow_path(h):
    B = Asm()
    S, NEG, AD = SB[0], 6, SB[1]
    sMODE, sTT, sT00 = sT0, sT1, sT2
    lb = lambda n: "L_s%d_%s" % (h, n)
    B.label("L_slow%d" % h)
    B.many(f"""
    s_nop 15
    v_mov_b32 v{NEG}, 0x3f80
    v_cndmask_b32 v{QT+2*h}, v{QT+2*h}, v{NEG}, {sr(sHI,2)}
    v_mov_b32 v{NEG}, 0xff800000
    v_mov_b32 v{vM}, v{NEG}
    s_sub_i32 s{sT00}, 8, s{sRT}
    s_max_i32 s{sT00}, s{sT00}, 0
    s_mov_b32 s{sMODE}, 0
    """)
    for r in range(16):
        B.i("v_mov_b32 v%d, 0" % (OO[h] + r))
    B.label(lb("pass"))
    B.i("s_mov_b32 s%d, s%d" % (sTT, sT00))
    B.label(lb("tile"))
    B.i("s_mul_i32 s%d, s%d, %d" % (sT3, sTT, KVS))
    B.i("s_nop 15")
    for k, a in enumerate([vKA[h], vKT[h]] + [vVA[h] + e for e in range(4)]):
        B.i("v_add_u32 v%d, s%d, v%d" % (AD + k, sT3, a))
    B.i("ds_read_b128 %s, v%d" % (vr(KMR, 4), AD))
    B.i("ds_read_b64 %s, v%d" % (vr(KTR, 2), AD + 1))
    for k in range(4):
        B.i("ds_read_b64_tr_b16 %s, v%d" % (vr(VVR + 2 * k, 2), AD + 2 + k))
    B.wait(nl=0)
    B.i("v_mfma_f32_32x32x16_bf16 %s, %s, %s, 0" % (vr(S, 16), vr(KMR, 4), vr(QM[h], 4)))
    B.i("v_mfma_f32_32x32x8_bf16 %s, %s, %s, %s" % (vr(S, 16), vr(KTR, 2), vr(QT + 2 * h, 2), vr(S, 16)))
    B.i("s_nop 15")
    B.i("s_cmp_lg_u32 s%d, 0" % sTT)
    B.i("s_cbranch_scc1 " + lb("n0"))
    for r in range(16):
        B.i("v_cndmask_b32 v%d, v%d, v%d, %s" % (S + r, NEG, S + r, sr(sMASK + 2 * r, 2)))
    B.label(lb("n0"))
    B.i("s_cmp_lg_u32 s%d, 8" % sTT)
    B.i("s_cbranch_scc1 " + lb("n8"))
    for r in range(16):
        B.i("v_cndmask_b32 v%d, v%d, v%d, %s" % (S + r, S + r, NEG, sr(sMASK + 2 * r, 2)))
    B.label(lb("n8"))
    B.i("s_cmp_lg_u32 s%d, 0" % sMODE)
    B.i("s_cbranch_scc1 " + lb("exp"))
    for r in range(0, 16, 2):
        B.i("v_max3_f32 v%d, v%d, v%d, v%d" % (vM, S + r, S + r + 1, vM))
    B.i("s_branch " + lb("next"))
    B.label(lb("exp"))
    for r in range(16):
        B.i("v_sub_f32 v%d, v%d, v%d" % (S + r, S + r, vM))
    for r in range(16):
        B.i("v_exp_f32 v%d, v%d" % (S + r, S + r))
    for r in range(8):
        B.i("v_cvt_pk_bf16_f32 v%d, v%d, v%d" % (PP + r, S + 2 * r, S + 2 * r + 1))
    for s in range(2):
        B.i("v_mfma_f32_32x32x16_bf16 %s, %s, %s, %s" % (vr(OO[h], 16), vr(VVR + 4 * s, 4), vr(PP + 4 * s, 4), vr(OO[h], 16)))
    B.label(lb("next"))
    B.many(f"""
    s_add_u32 s{sTT}, s{sTT}, 1
    s_cmp_le_u32 s{sTT}, 8
    s_cbranch_scc1 {lb("tile")}
    s_nop 15
    s_cmp_lg_u32 s{sMODE}, 0
    s_cbranch_scc1 {lb("done")}
    v_mov_b32 v{vM+1}, v{vM}
    s_nop 1
    v_permlane32_swap_b32 v{vM+1}, v{vM}
    v_max_f32 v{vM}, v{vM}, v{vM+1}
    s_mov_b32 s{sMODE}, 1
    s_branch {lb("pass")}
    """)
    B.label(lb("done"))
    if h == 0:
        B.many(o_txt(0, sD0))
        B.i("s_nop 1")
    B.i("s_branch L_back%d" % h)
    return B.text()


prologue()
gemm()
k1 = A.a
ool1 = "".join(OOL)
del OOL[:]
A.use(Asm())
A.a.nlabel = 50000
k2_prologue()
A.i("s_cmp_lg_u32 s%d, 0" % sCH)
A.i("s_cbranch_scc1 L_A")
main = A.a
other = main.fork(100000)
ns0 = nstamp[0]
g_path()
A.use(other)
nstamp[0] = ns0
a_path()
extra = other.text() + "".join(OOL) + slow_path(0) + slow_path(1)

KD = """.p2align 6
.amdhsa_kernel %s
  .amdhsa_next_free_vgpr 256
  .amdhsa_next_free_sgpr 102
  .amdhsa_accum_offset 256
  .amdhsa_group_segment_fixed_size 0
  .amdhsa_kernarg_size 80
  .amdhsa_user_sgpr_count 2
  .amdhsa_user_sgpr_kernarg_segment_ptr 1
  .amdhsa_system_sgpr_workgroup_id_x 1
.end_amdhsa_kernel
"""
K1, K2 = NAME + "_kernel", "attn_final_kernel"
hdr = open('cdna_kernels/%s.s.ref' % NAME).read().split('; Override launch')[0]
out = hdr + f"""; @launch kernel={K1} grid=(256,1,1) block=(512,1,1) lds={LDS_BYTES}
; @launch kernel={K2} grid=(256,1,1) block=(512,1,1) lds={LDS_BYTES}
.amdgcn_target "amdgcn-amd-amdhsa--gfx950"
.text
.globl {K1}
.p2align 8
.type {K1},@function
.set CODE_SPAN, L_fin - {K1} - 128
{K1}:
{k1.text()}L_end:
    s_endpgm
{ool1}.globl {K2}
.p2align 8
.type {K2},@function
{K2}:
{main.text()}L_end2:
    s_endpgm
{extra}L_fin:
    s_endpgm
.section .rodata,"a"
{KD % K1}{KD % K2}"""
open(sys.argv[1], 'w').write(out)
print("wslot", [round((waddr[j] - P0) / SLOT, 1) for j in range(25)])
for nm, a in (("k1", k1), ("G", main), ("A", other)):
    print(nm, "instructions:", sum(1 for x in a.ins[a.ghost:] if x.kind != 'label'), "nops:", sum(x.states for x in a.ins[a.ghost:] if x.kind == 'nop'))
json.dump(dict(HPS=HPS, HO_OFF=HO_OFF, HO_RG=HO_RG, WP_OFF=WP_OFF, WPS=WPS, STAMP_OFF=STAMP_OFF,
               stamps=stamps), open(sys.argv[1] + '.json', 'w'))
```
